```python
import torch

def _softmax(x, axis=-1):
    return torch.softmax(x, dim=axis)
def _gelu(x):
    return torch.nn.functional.gelu(x, approximate="tanh")
def _silu(x):
    return torch.nn.functional.silu(x)
def _sigmoid(x):
    return torch.sigmoid(x)
def _layernorm(x, axis=-1, eps=1e-5):
    m = x.mean(dim=axis, keepdim=True)
    v = x.var(dim=axis, keepdim=True, unbiased=False)
    return (x - m) / torch.sqrt(v + eps)
def _scatter_add(tgt, idx, src, axis=0):
    return tgt.clone().index_add_(axis, idx, src)
def _segment_sum(src, seg, n):
    out = torch.zeros((n,) + src.shape[1:], dtype=src.dtype)
    return out.index_add_(0, seg, src)
def _pad(x, pw):
    flat = tuple(v for pair in reversed(pw) for v in pair)
    return torch.nn.functional.pad(x, flat)

kernel_name = 'standalone__weight_only_int_gptq__prompt'

def setup_inputs():

    _w = (lambda a: (lambda t: t.to(torch.bfloat16) if t.is_floating_point() else t)(torch.as_tensor(a)))
    B, S, D, F = 1, 2048, 576, 4608
    bits = max(2, min(4, 4))
    pf = 32 // bits
    G = -1 if -1 > 0 else D
    G = max(pf, (G // pf) * pf)
    D = max(G, (D // G) * G)
    ng = D // G
    qmax = 1 << bits
    qw = torch.randint(0, qmax, (D, F)).to(torch.int64)
    packed = torch.zeros((D // pf, F), dtype=torch.int64)
    for i in range(pf):
        packed |= (qw[i::pf] << (i * bits))
    packed = packed.to(torch.int32)
    return {
        "x": _w((lambda *s: torch.randn(*s, dtype=torch.bfloat16) * 0.05)(B, S, D)),
        "qw_packed": _w(packed),
        "scales": _w(torch.abs((lambda *s: torch.randn(*s, dtype=torch.bfloat16) * 0.05)(ng, F)).to(float) * 0.1 + 0.01),
        "zeros": _w(torch.randint(0, qmax, (ng, F)).to(float)),
        "bits": _w((lambda _x: torch.as_tensor(_x, dtype=torch.int32))(bits)),
    }

def reference(x, qw_packed, scales, zeros, bits):
    b = int(bits)
    pf = 32 // b
    mask = (1 << b) - 1
    P, F = qw_packed.shape
    D = P * pf
    ng = scales.shape[0]
    G = D // ng
    shifts = (lambda x, dt: x.to(dt))(torch.arange(pf) * b, qw_packed.dtype)
    qw = ((qw_packed[:, None, :] >> shifts[None, :, None]) & mask).reshape(D, F)
    s = (lambda x, n, axis: torch.repeat_interleave(x, n, dim=axis))(scales, G, axis=0)
    z = (lambda x, n, axis: torch.repeat_interleave(x, n, dim=axis))(zeros, G, axis=0)
    w = ((lambda x, dt: x.to(dt))(qw, x.dtype) - z) * s
    return torch.einsum("bsd,df->bsf", x, w)
```

```python
NAME = "standalone__weight_only_int_gptq__prompt"
HEADER = """; Kernarg layout for this problem (64 bytes, ptrs only, base s[0:1]):
"""
M, K, N = 2048, 576, 4608
X_BYTES = M * K * 2
QW_BYTES = (K // 8) * N * 4
SZ_BYTES = N * 2
OUT_BYTES = M * N * 2


class Asm:
    def __init__(self):
        self.lines = []

    def __call__(self, s):
        for l in s.strip("\n").split("\n"):
            self.lines.append("    " + l.strip() if not l.strip().endswith(":") else l.strip())

    def text(self):
        return "\n".join(self.lines) + "\n"


def wrap(body, grid, block, lds, nvgpr, accum_offset, nsgpr=102):
    return (HEADER
            + f"; @launch grid=({grid},1,1) block=({block},1,1) lds={lds}\n"
            + '.amdgcn_target "amdgcn-amd-amdhsa--gfx950"\n.text\n'
            + f".globl {NAME}_kernel\n.p2align 8\n.type {NAME}_kernel,@function\n{NAME}_kernel:\n"
            + body
            + "    s_endpgm\n"
            + '.section .rodata,"a"\n.p2align 6\n'
            + f".amdhsa_kernel {NAME}_kernel\n"
            + f"  .amdhsa_next_free_vgpr {nvgpr}\n"
            + f"  .amdhsa_next_free_sgpr {nsgpr}\n"
            + f"  .amdhsa_accum_offset {accum_offset}\n"
            + "  .amdhsa_group_segment_fixed_size 0\n"
            + "  .amdhsa_kernarg_size 64\n"
            + "  .amdhsa_user_sgpr_count 2\n"
            + "  .amdhsa_user_sgpr_kernarg_segment_ptr 1\n"
            + "  .amdhsa_system_sgpr_workgroup_id_x 1\n"
            + "  .amdhsa_float_denorm_mode_32 3\n"
            + ".end_amdhsa_kernel\n")
```

```python
import sys
from common import *
a = Asm()
NT = N // 32
MT = M // 32
WGS = NT * MT // 4
a(f"""
s_cmp_ge_u32 s2, {WGS}
s_cbranch_scc1 L_done
s_load_dwordx4 s[4:7], s[0:1], 0
s_load_dwordx4 s[8:11], s[0:1], 16
s_load_dwordx2 s[12:13], s[0:1], 40
v_lshrrev_b32 v1, 6, v0
v_and_b32 v0, 63, v0
s_nop 0
v_readfirstlane_b32 s3, v1
s_lshl_b32 s14, s2, 2
s_add_u32 s14, s14, s3
s_and_b32 s15, s14, 63
s_lshr_b32 s16, s14, 6
s_waitcnt lgkmcnt(0)
s_mov_b32 s20, s4
s_and_b32 s21, s5, 0xffff
s_mov_b32 s22, {X_BYTES}
s_mov_b32 s23, 0x00020000
s_mov_b32 s24, s6
s_and_b32 s25, s7, 0xffff
s_mov_b32 s26, {QW_BYTES}
s_mov_b32 s27, 0x00020000
s_mov_b32 s28, s8
s_and_b32 s29, s9, 0xffff
s_mov_b32 s30, {SZ_BYTES}
s_mov_b32 s31, 0x00020000
s_mov_b32 s32, s10
s_and_b32 s33, s11, 0xffff
s_mov_b32 s34, {SZ_BYTES}
s_mov_b32 s35, 0x00020000
s_mov_b32 s36, s12
s_and_b32 s37, s13, 0xffff
s_mov_b32 s38, {OUT_BYTES}
s_mov_b32 s39, 0x00020000
v_and_b32 v2, 31, v0
v_lshrrev_b32 v3, 5, v0
s_lshl_b32 s17, s15, 5
s_lshl_b32 s18, s16, 5
v_add_u32 v4, s17, v2
s_mov_b32 s19, 1152
v_mul_lo_u32 v5, v4, s19
v_lshl_add_u32 v5, v3, 4, v5
v_add_u32 v6, s18, v2
v_lshlrev_b32 v6, 2, v6
s_mov_b32 s19, 18432
v_mul_lo_u32 v7, v3, s19
v_add_u32 v6, v6, v7
s_mov_b32 s40, 0x000f000f
v_mov_b32 v8, 0x43004300
v_mov_b32 v9, 0x00040000
v_mov_b32 v10, 0x000c0008
v_mov_b32 v12, 0x3f803f80
v_mov_b32 v13, 0x3f803f80
v_mov_b32 v14, 0x3f803f80
v_mov_b32 v15, 0x3f803f80
""")
for i in range(32):
    a(f"v_mov_b32 v{32+i}, 0")
a(f"""
s_mov_b32 s41, 0
s_mov_b32 s42, 0
s_mov_b32 s43, 0
L_loop:
buffer_load_dwordx4 v[16:19], v5, s[20:23], s42 offen
buffer_load_dword v20, v6, s[24:27], s43 offen
s_waitcnt vmcnt(0)
v_pk_lshrrev_b16 v24, v9, v20 op_sel:[0,0] op_sel_hi:[1,0]
v_pk_lshrrev_b16 v25, v10, v20 op_sel:[0,0] op_sel_hi:[1,0]
v_pk_lshrrev_b16 v26, v9, v20 op_sel:[0,1] op_sel_hi:[1,1]
v_pk_lshrrev_b16 v27, v10, v20 op_sel:[0,1] op_sel_hi:[1,1]
v_and_or_b32 v24, v24, s40, v8
v_and_or_b32 v25, v25, s40, v8
v_and_or_b32 v26, v26, s40, v8
v_and_or_b32 v27, v27, s40, v8
s_nop 1
v_mfma_f32_32x32x16_bf16 v[32:47], v[24:27], v[16:19], v[32:47]
v_mfma_f32_32x32x16_bf16 v[48:63], v[12:15], v[16:19], v[48:63]
s_add_u32 s42, s42, 32
s_add_u32 s43, s43, {2*18432}
s_add_u32 s41, s41, 1
s_cmp_lt_u32 s41, 36
s_cbranch_scc1 L_loop
""")
a(f"""
v_lshlrev_b32 v21, 3, v3
s_lshl_b32 s19, s18, 1
v_add_u32 v21, s19, v21
s_mov_b32 s19, {N*2}
v_mul_lo_u32 v22, v4, s19
v_add_u32 v22, v22, v21
""")
for g in range(4):
    a(f"buffer_load_dwordx2 v[{64+2*g}:{65+2*g}], v21, s[28:31], 0 offen offset:{16*g}")
    a(f"buffer_load_dwordx2 v[{72+2*g}:{73+2*g}], v21, s[32:35], 0 offen offset:{16*g}")
a("s_waitcnt vmcnt(0)")
a("v_mov_b32 v23, 0x43000000")
for g in range(4):
    for j in range(4):
        r = 32 + 4 * g + j
        ss = 64 + 2 * g + j // 2
        zz = 72 + 2 * g + j // 2
        if j % 2 == 0:
            a(f"v_lshlrev_b32 v80, 16, v{ss}")
            a(f"v_lshlrev_b32 v81, 16, v{zz}")
        else:
            a(f"v_and_b32 v80, 0xffff0000, v{ss}")
            a(f"v_and_b32 v81, 0xffff0000, v{zz}")
        a(f"v_add_f32 v81, v23, v81")
        a(f"v_fma_f32 v{r}, -v81, v48, v{r}")
        a(f"v_mul_f32 v{r}, v80, v{r}")
    a(f"v_cvt_pk_bf16_f32 v84, v{32+4*g}, v{33+4*g}")
    a(f"v_cvt_pk_bf16_f32 v85, v{34+4*g}, v{35+4*g}")
    a(f"buffer_store_dwordx2 v[84:85], v22, s[36:39], 0 offen offset:{16*g}")
    a("s_nop 1")
a("L_done:")
open(sys.argv[1], "w").write(wrap(a.text(), WGS, 256, 0, 88, 88))
```

```python
import sys
from common import *

class Cfg:
    xcd_m = 4
    rot = 1
    warm = 1
    stamps = 0
    st_flags = "sc1"
    b_early = 8
    prio = 1
    dma_ahead = 3

XT = 36864
R_OFF = 4 * XT
LDS_BYTES = R_OFF + 512
ROWB = N * 2
QROW = N * 4

S_X, S_W, S_SC, S_ZE, S_O = 20, 24, 28, 32, 36
S_XK = 40
S_WK = 49
S_T = 58
S_MASK = 64
S_OB = 65
S_LW = 66
S_NB = 67
S_OT = 68
S_STAMP = 72

def mfma(d, a_, b, first=False):
    c = "0" if first else f"v[{d}:{d+15}]"
    return f"v_mfma_f32_32x32x16_bf16 v[{d}:{d+15}], v[{a_}:{a_+3}], v[{b}:{b+3}], {c}"

def dequant(dst, src, sh0, sh1, c43):
    return [
        f"v_pk_lshrrev_b16 v{dst}, v{sh0}, v{src} op_sel:[0,0] op_sel_hi:[1,0]",
        f"v_pk_lshrrev_b16 v{dst+1}, v{sh1}, v{src} op_sel:[0,0] op_sel_hi:[1,0]",
        f"v_pk_lshrrev_b16 v{dst+2}, v{sh0}, v{src} op_sel:[0,1] op_sel_hi:[1,1]",
        f"v_pk_lshrrev_b16 v{dst+3}, v{sh1}, v{src} op_sel:[0,1] op_sel_hi:[1,1]",
        f"v_and_or_b32 v{dst}, v{dst}, s{S_MASK}, v{c43}",
        f"v_and_or_b32 v{dst+1}, v{dst+1}, s{S_MASK}, v{c43}",
        f"v_and_or_b32 v{dst+2}, v{dst+2}, s{S_MASK}, v{c43}",
        f"v_and_or_b32 v{dst+3}, v{dst+3}, s{S_MASK}, v{c43}",
    ]

def unpack_consts(raw_s, raw_z, S, C, k128):
    out = []
    for i in range(8):
        out.append(f"v_lshlrev_b32 v{S+2*i}, 16, v{raw_s+i}")
        out.append(f"v_and_b32 v{S+2*i+1}, 0xffff0000, v{raw_s+i}")
        out.append(f"v_lshlrev_b32 v{C+2*i}, 16, v{raw_z+i}")
        out.append(f"v_and_b32 v{C+2*i+1}, 0xffff0000, v{raw_z+i}")
        out.append(f"v_add_f32 v{C+2*i}, v{k128}, v{C+2*i}")
        out.append(f"v_add_f32 v{C+2*i+1}, v{k128}, v{C+2*i+1}")
    return out

def epilogue(acc, S, C, R, tmp, vst, s_off, cfg):
    out = []
    for r in range(16):
        out.append(f"v_fma_f32 v{acc+r}, -v{C+r}, v{R}, v{acc+r}")
    for r in range(16):
        out.append(f"v_mul_f32 v{acc+r}, v{S+r}, v{acc+r}")
    for d in range(8):
        out.append(f"v_cvt_pk_bf16_f32 v{tmp+d}, v{acc+2*d}, v{acc+2*d+1}")
    out.append("s_nop 1")
    for d in range(4):
        out.append(f"v_permlane16_swap_b32 v{tmp+d}, v{tmp+4+d}")
    out.append(f"s_add_u32 s{S_T}, s{s_off}, {16*ROWB}")
    out.append(f"buffer_store_dwordx4 v[{tmp}:{tmp+3}], v{vst}, s[{S_O}:{S_O+3}], s{s_off} offen {cfg.st_flags}")
    out.append(f"buffer_store_dwordx4 v[{tmp+4}:{tmp+7}], v{vst}, s[{S_O}:{S_O+3}], s{S_T} offen {cfg.st_flags}")
    out.append("s_nop 1")
    return out

def xoff(j, ki):
    return j * 4096 + (ki >> 1) * 512

class Gen:
    def __init__(self, cfg):
        self.cfg = cfg
        self.a = Asm()
        self.nst = 0

    def stamp(self, i):
        if self.cfg.stamps:
            op = "s_memtime" if self.cfg.stamps == 1 else "s_memrealtime"
            self.a(f"{op} s[{S_STAMP+2*i}:{S_STAMP+2*i+1}]")

    def prologue(self):
        a, cfg = self.a, self.cfg
        xm = cfg.xcd_m; xn = 32 // xm; mg = 16 // xm
        if cfg.stamps:
            a("s_memrealtime s[96:97]")
        self.stamp(0)
        a(f"""
        s_cmp_ge_u32 s2, 256
        s_cbranch_scc1 L_done
        s_load_dwordx4 s[4:7], s[0:1], 0
        s_load_dwordx4 s[8:11], s[0:1], 16
        s_load_dwordx2 s[12:13], s[0:1], 40
        v_lshrrev_b32 v1, 6, v0
        v_and_b32 v0, 63, v0
        s_and_b32 s14, s2, 7
        v_readfirstlane_b32 s3, v1
        s_lshr_b32 s15, s2, 3
        s_and_b32 s16, s14, {mg-1}
        s_lshr_b32 s17, s14, {mg.bit_length()-1}
        s_mul_i32 s16, s16, {xm}
        s_mul_i32 s17, s17, {xn}
        s_and_b32 s18, s15, {xm-1}
        s_lshr_b32 s19, s15, {xm.bit_length()-1}
        s_add_u32 s16, s16, s18
        s_add_u32 s17, s17, s19
        s_and_b32 s14, s3, 3
        """)
        if cfg.rot:
            a(f"""
            s_lshl_b32 s15, s16, 1
            s_add_u32 s15, s15, s17
            s_mul_hi_u32 s18, s15, {(2**32 + 8)//9}
            s_mul_i32 s18, s18, 9
            s_sub_u32 s15, s15, s18
            """)
        else:
            a("s_mov_b32 s15, 0")
        a(f"""
        s_mul_i32 s18, s16, {128*1152}
        s_mul_i32 s19, s17, {288*4}
        """)
        for j in range(9):
            a(f"""
            s_lshl_b32 s{S_T}, s15, 7
            s_add_u32 s{S_XK+j}, s18, s{S_T}
            s_mul_i32 s{S_T}, s15, {8*QROW}
            s_add_u32 s{S_WK+j}, s19, s{S_T}
            """)
            if j < 8:
                a(f"""
                s_add_u32 s15, s15, 1
                s_cmp_eq_u32 s15, 9
                s_cselect_b32 s15, 0, s15
                """)
        a(f"""
        s_mov_b32 s{S_MASK}, 0x000f000f
        s_mul_i32 s{S_OB}, s16, {128*ROWB}
        s_mul_i32 s{S_NB}, s17, {288*2}
        s_add_u32 s{S_OB}, s{S_OB}, s{S_NB}
        s_mov_b32 s{S_X+2}, {X_BYTES}
        s_mov_b32 s{S_X+3}, 0x00020000
        s_mov_b32 s{S_W+2}, {QW_BYTES}
        s_mov_b32 s{S_W+3}, 0x00020000
        s_mov_b32 s{S_SC+2}, {SZ_BYTES}
        s_mov_b32 s{S_SC+3}, 0x00020000
        s_mov_b32 s{S_ZE+2}, {SZ_BYTES}
        s_mov_b32 s{S_ZE+3}, 0x00020000
        s_mov_b32 s{S_O+2}, {OUT_BYTES}
        s_mov_b32 s{S_O+3}, 0x00020000
        """)
        a(f"""
        v_and_b32 v2, 31, v0
        v_lshrrev_b32 v3, 5, v0
        v_and_b32 v4, 0x13, v2
        v_lshlrev_b32 v5, 1, v2
        v_and_b32 v5, 8, v5
        v_or_b32 v4, v4, v5
        v_lshrrev_b32 v5, 1, v2
        v_and_b32 v5, 4, v5
        v_or_b32 v4, v4, v5
        v_lshlrev_b32 v4, 2, v4
        v_mul_u32_u24 v5, {QROW}, v3
        v_add_u32 v4, v4, v5
        v_lshrrev_b32 v5, 3, v2
        v_lshlrev_b32 v5, 10, v5
        v_and_b32 v6, 7, v2
        v_lshl_add_u32 v5, v6, 6, v5
        v_bfe_u32 v6, v2, 2, 2
        v_xor_b32 v6, v6, v3
        v_lshl_add_u32 v5, v6, 4, v5
        v_xor_b32 v6, 32, v5
        v_and_b32 v7, 15, v0
        v_mul_u32_u24 v7, {ROWB}, v7
        v_bfe_u32 v1, v0, 4, 1
        v_lshl_add_u32 v7, v1, 5, v7
        v_lshl_add_u32 v7, v3, 4, v7
        s_cmp_ge_u32 s3, 4
        s_waitcnt lgkmcnt(0)
        s_mov_b32 s{S_X}, s4
        s_and_b32 s{S_X+1}, s5, 0xffff
        s_mov_b32 s{S_W}, s6
        s_and_b32 s{S_W+1}, s7, 0xffff
        s_mov_b32 s{S_SC}, s8
        s_and_b32 s{S_SC+1}, s9, 0xffff
        s_mov_b32 s{S_ZE}, s10
        s_and_b32 s{S_ZE+1}, s11, 0xffff
        s_mov_b32 s{S_O}, s12
        s_and_b32 s{S_O+1}, s13, 0xffff
        s_cmp_ge_u32 s3, 4
        s_cbranch_scc1 L_roleB
        """)

    def wload(self, dst, vaddr, ks, ncol_off):
        j, ki = ks // 4, ks % 4
        return [f"s_add_u32 s{S_T+1}, s{S_WK+j}, {2*ki*QROW}",
                f"buffer_load_dword v{dst}, v{vaddr}, s[{S_W}:{S_W+3}], s{S_T+1} offen offset:{ncol_off}"]

    def role_a(self):
        a, cfg = self.a, self.cfg
        XA, WA, W8A, VST, C43, SH0, SH1, K128 = 8, 16, 17, 18, 19, 20, 21, 22
        SEL, RS, XF, WF, PA, P8, ACC, S, C, RAW = 24, 28, 32, 64, 72, 108, 144, 208, 224, 240
        self.stamp(1)
        a(f"""
        s_lshl_b32 s{S_T}, s14, 8
        v_add_u32 v{WA}, s{S_T}, v4
        """)
        nv = 0
        for ks in range(36):
            for i in self.wload(PA + ks, WA, ks, 0): a(i)
        a(f"""
        s_lshl_b32 s{S_T}, s14, 7
        s_add_u32 s{S_T}, s{S_T}, s{S_NB}
        v_lshlrev_b32 v1, 4, v3
        buffer_load_dwordx4 v[{ACC}:{ACC+3}], v1, s[{S_SC}:{S_SC+3}], s{S_T} offen
        buffer_load_dwordx4 v[{ACC+4}:{ACC+7}], v1, s[{S_SC}:{S_SC+3}], s{S_T} offen offset:32
        buffer_load_dwordx4 v[{ACC+8}:{ACC+11}], v1, s[{S_ZE}:{S_ZE+3}], s{S_T} offen
        buffer_load_dwordx4 v[{ACC+12}:{ACC+15}], v1, s[{S_ZE}:{S_ZE+3}], s{S_T} offen offset:32
        """)
        for u in range(4):
            a(f"""
            s_add_u32 s{S_T}, s14, {u}
            s_and_b32 s{S_T}, s{S_T}, 3
            s_mul_i32 s{S_T+1}, s{S_T}, {XT}
            v_add_u32 v{XA+2*u}, s{S_T+1}, v5
            v_add_u32 v{XA+2*u+1}, s{S_T+1}, v6
            s_mul_i32 s{S_OT+u}, s{S_T}, {32*ROWB}
            s_add_u32 s{S_OT+u}, s{S_OT+u}, s{S_OB}
            s_lshl_b32 s{S_T+1}, s14, 7
            s_add_u32 s{S_OT+u}, s{S_OT+u}, s{S_T+1}
            """)
        a(f"""
        v_mov_b32 v{VST}, v7
        v_mov_b32 v{W8A}, v4
        v_mov_b32 v{C43}, 0x43004300
        v_mov_b32 v{SH0}, 0x00040000
        v_mov_b32 v{SH1}, 0x000c0008
        v_mov_b32 v{K128}, 0x43000000
        v_lshrrev_b32 v1, 2, v0
        v_lshrrev_b32 v23, 4, v0
        v_xor_b32 v1, v1, v23
        v_and_b32 v1, 1, v1
        v_add_u32 v1, -1, v1
        v_and_b32 v{SEL}, 0x3f803f80, v1
        v_mov_b32 v{SEL+1}, v{SEL}
        v_mov_b32 v{SEL+2}, v{SEL}
        v_mov_b32 v{SEL+3}, v{SEL}
        """)
        self.warm_entry("A")
        if cfg.prio:
            a("s_setprio 2")
        a("s_waitcnt vmcnt(0)")
        for i in unpack_consts(ACC, ACC + 8, S, C, K128): a(i)
        self.stamp(2)
        for i in dequant(WF, PA, SH0, SH1, C43): a(i)
        a("s_barrier")
        self.stamp(3)
        for u in range(4):
            a(f"ds_read_b128 v[{XF+4*u}:{XF+4*u+3}], v{XA+2*u} offset:{xoff(0,0)}")
        later = []
        for ks in range(36):
            later.append(self.wload(P8 + ks, W8A, ks, 1024))
        for ks in range(36):
            cur, nxt = ks & 1, (ks + 1) & 1
            j2, ki2 = (ks + 1) // 4, (ks + 1) % 4
            fill = dequant(WF + 4 * nxt, PA + ks + 1, SH0, SH1, C43) if ks < 35 else []
            if ks < 35 and ki2 == 0:
                a("s_barrier")
            for u in range(4):
                a(f"s_waitcnt lgkmcnt({3 if ks < 35 or u == 0 else 3 - u})")
                a(mfma(ACC + 16 * u, WF + 4 * cur, XF + 16 * cur + 4 * u, first=(ks == 0)))
                if ks < 35:
                    a(f"ds_read_b128 v[{XF+16*nxt+4*u}:{XF+16*nxt+4*u+3}], v{XA+2*u+(ki2&1)} offset:{xoff(j2,ki2)}")
                for i in fill[(0,3,6,8)[u]:(3,6,8,8)[u]]: a(i)
                if u == 0:
                    c = "0" if ks == 0 else f"v[{RS}:{RS+3}]"
                    a(f"v_mfma_f32_16x16x32_bf16 v[{RS}:{RS+3}], v[{SEL}:{SEL+3}], v[{XF+16*cur}:{XF+16*cur+3}], {c}")
                if u == 2:
                    for i in later[ks]: a(i)
            self.pad()
        self.stamp(4)
        a(f"""
        s_lshl_b32 s{S_T}, s14, 7
        s_add_u32 s{S_T}, s{S_T}, {R_OFF}
        v_lshlrev_b32 v1, 2, v2
        v_add_u32 v23, s{S_T}, v1
        ds_write_b32 v23, v{RS}
        s_lshl_b32 s{S_T}, s14, 7
        s_add_u32 s{S_T}, s{S_NB}, 512
        v_lshlrev_b32 v23, 4, v3
        buffer_load_dwordx4 v[{RAW}:{RAW+3}], v23, s[{S_SC}:{S_SC+3}], s{S_T} offen
        buffer_load_dwordx4 v[{RAW+4}:{RAW+7}], v23, s[{S_SC}:{S_SC+3}], s{S_T} offen offset:32
        buffer_load_dwordx4 v[{RAW+8}:{RAW+11}], v23, s[{S_ZE}:{S_ZE+3}], s{S_T} offen
        buffer_load_dwordx4 v[{RAW+12}:{RAW+15}], v23, s[{S_ZE}:{S_ZE+3}], s{S_T} offen offset:32
        s_waitcnt lgkmcnt(0)
        s_barrier
        """)
        if cfg.prio:
            a("s_setprio 0")
        R = PA
        for u in range(1, 4):
            a(f"""
            s_add_u32 s{S_T}, s14, {u}
            s_and_b32 s{S_T}, s{S_T}, 3
            s_lshl_b32 s{S_T}, s{S_T}, 7
            s_add_u32 s{S_T}, s{S_T}, {R_OFF}
            v_add_u32 v23, s{S_T}, v1
            ds_read_b32 v{R+u}, v23
            """)
        a(f"v_mov_b32 v{R}, v{RS}")
        self.stamp(5)
        for u in range(4):
            if u == 1:
                a("s_waitcnt lgkmcnt(0)")
            for i in epilogue(ACC + 16 * u, S, C, R + u, XF + 8 * (u & 1), VST, S_OT + u, cfg): a(i)
            self.pad()
        self.stamp(6)
        a("s_waitcnt vmcnt(8)")
        for i in unpack_consts(RAW, RAW + 8, S, C, K128): a(i)
        self.pad()
        XR = 48
        for p in range(3):
            a(f"ds_read_b128 v[{XR+4*p}:{XR+4*p+3}], v{XA+(p&1)} offset:{xoff(p//4,p%4)}")
        for i in dequant(WF, P8, SH0, SH1, C43): a(i)
        for ks in range(36):
            cur, nxt = ks & 1, (ks + 1) & 1
            p = ks + 3
            if p < 36:
                a(f"ds_read_b128 v[{XR+4*(p%4)}:{XR+4*(p%4)+3}], v{XA+(p&1)} offset:{xoff(p//4,p%4)}")
            a(f"s_waitcnt lgkmcnt({min(3, 35-ks)})")
            a("s_setprio 3" if cfg.prio else "s_nop 0")
            a(mfma(ACC, WF + 4 * cur, XR + 4 * (ks % 4), first=(ks == 0)))
            if cfg.prio:
                a("s_setprio 0")
            if ks < 35:
                for i in dequant(WF + 4 * nxt, P8 + ks + 1, SH0, SH1, C43): a(i)
            self.pad()
        self.stamp(7)
        a(f"""
        s_mul_i32 s{S_OT}, s14, {32*ROWB}
        s_add_u32 s{S_OT}, s{S_OT}, s{S_OB}
        s_add_u32 s{S_OT}, s{S_OT}, 512
        s_nop 7
        s_nop 3
        """)
        for i in epilogue(ACC, S, C, R, XF, VST, S_OT, cfg): a(i)
        self.stamp(8)
        a("s_branch L_end")

    def role_b(self):
        a, cfg = self.a, self.cfg
        XA, DV, WA, VST, C43, SH0, SH1, R, K128 = 8, 10, 12, 13, 14, 15, 16, 17, 21
        XR, TMP, S, C, ACC, WB = 24, 40, 48, 64, 80, 112
        a("L_roleB:")
        self.stamp(1)
        a(f"""
        v_bfe_u32 v1, v0, 2, 3
        v_mul_u32_u24 v{DV}, 1152, v1
        v_lshl_add_u32 v{DV}, v3, 6, v{DV}
        v_bfe_u32 v1, v0, 4, 1
        v_and_b32 v22, 3, v0
        v_xor_b32 v1, v1, v22
        v_lshl_add_u32 v{DV}, v1, 4, v{DV}
        v_xor_b32 v{DV+1}, 32, v{DV}
        s_mul_i32 s{S_LW}, s14, {XT}
        s_mul_i32 s{S_T+2}, s14, {32*1152}
        """)
        def dma(j):
            for rb in range(4):
                a(f"s_add_u32 m0, s{S_LW}, {j*4096 + rb*1024}")
                a(f"s_add_u32 s{S_T}, s{S_XK+j}, s{S_T+2}")
                a(f"s_add_u32 s{S_T}, s{S_T}, {rb*8*1152}")
                a(f"buffer_load_dwordx4 v{DV+(rb&1)}, s[{S_X}:{S_X+3}], s{S_T} offen lds")
        q = []
        AH = cfg.dma_ahead
        for j in range(AH):
            dma(j); q += [("D", j)] * 4
        a(f"""
        s_lshl_b32 s{S_T}, s14, 8
        s_add_u32 s{S_T}, s{S_T}, 128
        v_add_u32 v{WA}, s{S_T}, v4
        """)
        def wl(ks):
            for i in self.wload(WB + 4 * ks + 3, WA, ks, 0): a(i)
            q.append(("W", ks))
        for ks in range(8): wl(ks)
        a(f"""
        s_lshl_b32 s{S_T}, s14, 7
        s_add_u32 s{S_T}, s{S_T}, s{S_NB}
        v_lshlrev_b32 v1, 4, v3
        buffer_load_dwordx4 v[{ACC}:{ACC+3}], v1, s[{S_SC}:{S_SC+3}], s{S_T} offen offset:64
        buffer_load_dwordx4 v[{ACC+4}:{ACC+7}], v1, s[{S_SC}:{S_SC+3}], s{S_T} offen offset:96
        buffer_load_dwordx4 v[{ACC+8}:{ACC+11}], v1, s[{S_ZE}:{S_ZE+3}], s{S_T} offen offset:64
        buffer_load_dwordx4 v[{ACC+12}:{ACC+15}], v1, s[{S_ZE}:{S_ZE+3}], s{S_T} offen offset:96
        v_mov_b32 v{XA}, v5
        v_mov_b32 v{XA+1}, v6
        v_mov_b32 v{VST}, v7
        v_mov_b32 v{C43}, 0x43004300
        v_mov_b32 v{SH0}, 0x00040000
        v_mov_b32 v{SH1}, 0x000c0008
        v_mov_b32 v{K128}, 0x43000000
        """)
        q += [("C", 0)] * 4
        for u in range(4):
            a(f"""
            s_add_u32 s{S_OT+u}, s{S_OB}, {u*32*ROWB + 64}
            s_lshl_b32 s{S_T+1}, s14, 7
            s_add_u32 s{S_OT+u}, s{S_OT+u}, s{S_T+1}
            """)
        self.warm_entry("B")
        def wait_for(tag):
            idx = max(i for i, t in enumerate(q) if t == tag)
            a(f"s_waitcnt vmcnt({len(q) - 1 - idx})")
        for j in range(9):
            wait_for(("D", j))
            a("s_barrier")
            if j == 0:
                self.stamp(3)
            if j + AH < 9:
                dma(j + AH); q += [("D", j + AH)] * 4
            for ks in range(4 * j + 8, min(4 * j + 12, 36)): wl(ks)
            if j == 1:
                wait_for(("C", 0))
                for i in unpack_consts(ACC, ACC + 8, S, C, K128): a(i)
                self.pad()
            for ks in range(4 * j, 4 * j + 4):
                wait_for(("W", ks))
                for i in dequant(WB + 4 * ks, WB + 4 * ks + 3, SH0, SH1, C43): a(i)
            self.pad()
        self.stamp(4)
        total = 144
        def rd(p):
            ks = p % 36
            if ks == 0 and p > 0:
                a(f"v_add_u32 v{XA}, {XT}, v{XA}")
                a(f"v_add_u32 v{XA+1}, {XT}, v{XA+1}")
            a(f"ds_read_b128 v[{XR+4*(p%4)}:{XR+4*(p%4)+3}], v{XA+(ks&1)} offset:{xoff(ks//4,ks%4)}")
        for p in range(3): rd(p)
        fill = []
        extra_lgkm = 0
        for p in range(total):
            t, ks = p // 36, p % 36
            if p == cfg.b_early:
                a("s_barrier")
                if cfg.prio:
                    a("s_setprio 2")
                a("v_lshlrev_b32 v1, 2, v2")
                a(f"v_add_u32 v1, {R_OFF}, v1")
                for u in range(4):
                    a(f"ds_read_b32 v{R+u}, v1 offset:{128*u}")
                a("s_waitcnt lgkmcnt(0)")
                self.stamp(5)
            if p + 3 < total: rd(p + 3)
            a(f"s_waitcnt lgkmcnt({min(3, total-1-p)})")
            a(mfma(ACC + 16 * (t & 1), WB + 4 * ks, XR + 4 * (p % 4), first=(ks == 0)))
            if ks == 3 and t > 0:
                fill = epilogue(ACC + 16 * ((t - 1) & 1), S, C, R + t - 1, TMP, VST, S_OT + t - 1, cfg)
            n = 0
            while fill and n < 2:
                i = fill.pop(0)
                a(i)
                if not i.startswith("s_"): n += 2 if "swap" in i else 1
            self.pad()
            if ks == 35:
                self.stamp(6 + t if t < 3 else 9)
        assert not fill
        a("s_nop 7\ns_nop 3")
        for i in epilogue(ACC + 16, S, C, R + 3, TMP, VST, S_OT + 3, cfg): a(i)
        self.stamp(10)

    def warm_entry(self, role):
        if self.cfg.warm:
            self.a(f"@@WARM_{role}@@")

    def pad(self):
        if self.cfg.warm:
            self.a("@@PAD@@")

    def finish(self):
        a, cfg = self.a, self.cfg
        a("L_end:")
        if cfg.stamps:
            a(f"""
            s_waitcnt vmcnt(0)
            {"s_memtime" if cfg.stamps == 1 else "s_memrealtime"} s[{S_STAMP+22}:{S_STAMP+23}]
            s_memrealtime s[98:99]
            s_load_dwordx2 s[40:41], s[0:1], 56
            s_waitcnt lgkmcnt(0)
            s_mov_b32 s44, s40
            s_and_b32 s45, s41, 0xffff
            s_mov_b32 s46, 0x100000
            s_mov_b32 s47, 0x00020000
            s_lshl_b32 s48, s2, 3
            s_add_u32 s48, s48, s3
            s_lshl_b32 s48, s48, 6
            v_mov_b32 v2, s48
            v_mov_b32 v4, s96
            s_getreg_b32 s49, hwreg(HW_REG_XCC_ID)
            v_mov_b32 v5, s49
            s_getreg_b32 s49, hwreg(HW_REG_HW_ID)
            v_mov_b32 v6, s49
            v_mov_b32 v7, s98
            v_cmp_eq_u32 vcc, 0, v0
            s_and_saveexec_b64 s[50:51], vcc
            buffer_store_dwordx4 v[4:7], v2, s[44:47], 0 offen
            s_nop 1
            """)
            for qd in range(3):
                for j in range(4):
                    a(f"v_mov_b32 v{4+j}, s{S_STAMP+2*(4*qd+j)}")
                a(f"buffer_store_dwordx4 v[4:7], v2, s[44:47], 0 offen offset:{16+16*qd}")
                a("s_nop 1")
        a("L_done:")

def isize(l):
    l = l.strip()
    if not l or l.endswith(":") or l.startswith("@@"): return 0
    op = l.split()[0]
    if op.startswith(("v_mfma", "v_pk_", "v_and_or", "v_fma", "v_cvt_pk", "buffer_", "ds_", "v_lshl_add", "v_bfe", "s_memtime", "s_load", "s_memrealtime", "v_mul_lo")): return 8
    import re
    if re.search(r"0x[0-9a-f]{3,}|\b\d{3,}\b", l.split(None, 1)[1] if " " in l else "") and not op.startswith(("s_waitcnt", "s_nop", "s_setprio")):
        t = re.sub(r"[vs]\[?\d+(:\d+\])?", "", l.split(None, 1)[1])
        if re.search(r"0x[0-9a-f]+|\b\d{2,}\b", t):
            nums = re.findall(r"0x[0-9a-f]+|\b\d+\b", t)
            if any(int(x, 0) > 64 for x in nums): return 8
    return 4

def resolve_pads(lines, spacing=1024):
    off = 0; last = -10**9; chosen = []
    for i, l in enumerate(lines):
        if l.strip() == "@@PAD@@":
            if off - last >= spacing - 96:
                chosen.append(i); last = off; off += 4
        else:
            off += isize(l)
    return chosen, off

def build(cfg, fname):
    g = Gen(cfg)
    g.prologue()
    g.role_a()
    g.role_b()
    g.finish()
    lines = [l for l in g.a.lines if l.strip()]
    if cfg.warm:
        chosen, size = resolve_pads(lines)
        ib = next(i for i, l in enumerate(lines) if l.strip() == "L_roleB:")
        pa = [i for i in chosen if i < ib]
        pb = [i for i in chosen if i > ib]
        order = []
        while pa or pb:
            if pa: order.append(pa.pop(0))
            if pb: order.append(pb.pop(0))
        npad = len(order)
        name = {idx: k for k, idx in enumerate(order)}
        out = []
        for i, l in enumerate(lines):
            s = l.strip()
            if s == "@@PAD@@":
                if i in name:
                    k = name[i]
                    nxt = f"L_pad{k+8}" if k + 8 < npad else ("L_wretA" if k % 8 < 4 else "L_wretB")
                    out.append(f"L_pad{k}:")
                    out.append(f"    s_cbranch_execz {nxt}")
            elif s.startswith("@@WARM_"):
                role = s[7]
                base = 0 if role == "A" else 4
                out.append("    s_mov_b64 exec, 0")
                for w in range(4):
                    if base + w < npad:
                        out.append(f"    s_cmp_eq_u32 s14, {w}")
                        out.append(f"    s_cbranch_scc1 L_pad{base+w}")
                out.append(f"L_wret{role}:")
                out.append("    s_mov_b64 exec, -1")
            else:
                out.append(l)
        lines = out
    open(fname, "w").write(wrap("\n".join(lines) + "\n", 256, 512, LDS_BYTES, 256, 256))

if __name__ == "__main__":
    cfg = Cfg()
    for kv in sys.argv[2:]:
        k, v = kv.split("=")
        setattr(cfg, k, int(v) if v.lstrip("-").isdigit() else v.replace("+", " "))
    build(cfg, sys.argv[1])
```

```python
import sys, re
from common import *
from k1 import isize

class Cfg:
    xcd_m = 4
    warm = 1
    stamps = 0
    st_flags = "sc1"
    ahead = 3
    prio = 1
    padsp = 1024
    nors = 0
    pre = 1

MT = 18432
R_OFF = 8 * MT
W8_OFF = R_OFF + 512
SC_OFF = W8_OFF + 9216
ZE_OFF = SC_OFF + 1024
LDS_BYTES = ZE_OFF + 1024
ROWB = N * 2
QROW = N * 4

S_X, S_W, S_SC, S_ZE, S_O = 20, 24, 28, 32, 36
S_XB, S_WB = 40, 41
S_T = 58
S_MASK = 64
S_OB = 65
S_LW = 66
S_NB = 67
S_OT = 68
S_STAMP = 72

V_DV, V_WA, V_ST, V_C43, V_SH0, V_SH1, V_K128, V_LB = 4, 6, 7, 8, 9, 10, 11, 12
V_XA = 13
V_ONE = 20
V_RS = 24
V_R = 28
V_S, V_C = 36, 44
V_TMP = 52
V_ACC = 56
V_XF = 88
V_W = 112

def mfma(d, a_, b, first=False):
    c = "0" if first else f"v[{d}:{d+3}]"
    return f"v_mfma_f32_16x16x32_bf16 v[{d}:{d+3}], v[{a_}:{a_+3}], v[{b}:{b+3}], {c}"

def dequant2(F, w0=None, w1=None):
    if w0 is None: w0, w1 = F + 6, F + 7
    out = []
    for base, w in ((F, w0), (F + 4, w1)):
        out += [
            f"v_pk_lshrrev_b16 v{base}, v{V_SH0}, v{w} op_sel:[0,0] op_sel_hi:[1,0]",
            f"v_pk_lshrrev_b16 v{base+1}, v{V_SH1}, v{w} op_sel:[0,0] op_sel_hi:[1,0]",
            f"v_pk_lshrrev_b16 v{base+2}, v{V_SH0}, v{w} op_sel:[0,1] op_sel_hi:[1,1]",
            f"v_pk_lshrrev_b16 v{base+3}, v{V_SH1}, v{w} op_sel:[0,1] op_sel_hi:[1,1]",
        ]
        out += [f"v_and_or_b32 v{base+i}, v{base+i}, s{S_MASK}, v{V_C43}" for i in range(4)]
    return out

def unpack_consts(raw_s, raw_z, S, C):
    out = []
    for r in range(4):
        out.append(f"v_lshlrev_b32 v{S+r}, 16, v{raw_s+r}")
        out.append(f"v_and_b32 v{S+4+r}, 0xffff0000, v{raw_s+r}")
        out.append(f"v_lshlrev_b32 v{C+r}, 16, v{raw_z+r}")
        out.append(f"v_and_b32 v{C+4+r}, 0xffff0000, v{raw_z+r}")
        out.append(f"v_add_f32 v{C+r}, v{V_K128}, v{C+r}")
        out.append(f"v_add_f32 v{C+4+r}, v{V_K128}, v{C+4+r}")
    return out

def epilogue(acc, S, C, R, tmp, s_off, cfg):
    out = []
    for r in range(8):
        out.append(f"v_fma_f32 v{acc+r}, -v{C+r}, v{R}, v{acc+r}")
    for r in range(8):
        out.append(f"v_mul_f32 v{acc+r}, v{S+r}, v{acc+r}")
    for r in range(4):
        out.append(f"v_cvt_pk_bf16_f32 v{tmp+r}, v{acc+r}, v{acc+4+r}")
    out.append(f"buffer_store_dwordx4 v[{tmp}:{tmp+3}], v{V_ST}, s[{S_O}:{S_O+3}], s{s_off} offen {cfg.st_flags}")
    return out

def xoff(ks):
    return (ks >> 1) * 2048 + (ks & 1) * 512

class Gen:
    def __init__(self, cfg):
        self.cfg = cfg
        self.a = Asm()
        self.q = []

    def stamp(self, i):
        if self.cfg.stamps:
            op = "s_memtime" if self.cfg.stamps == 1 else "s_memrealtime"
            self.a(f"{op} s[{S_STAMP+2*i}:{S_STAMP+2*i+1}]")

    def pad(self):
        if self.cfg.warm:
            self.a("@@PAD@@")

    def wait_vm(self, tag):
        idx = max(i for i, t in enumerate(self.q) if t == tag)
        self.a(f"s_waitcnt vmcnt({len(self.q) - 1 - idx})")

    def block_loads(self, b):
        out = []
        for h in range(2):
            ks = 2 * b + h
            F = V_W + 8 * ks
            g = [f"s_add_u32 s{S_T+1}, s{S_WB}, {4*ks*QROW}",
                 f"buffer_load_dwordx2 v[{F+6}:{F+7}], v{V_WA}, s[{S_W}:{S_W+3}], s{S_T+1} offen"]
            out.append((g, ("B", b)))
        for rb in range(2):
            g = [f"s_add_u32 m0, s{S_LW}, {b*2048 + rb*1024}",
                 f"s_add_u32 s{S_T}, s{S_XB}, {rb*8*1152 + b*128}",
                 f"buffer_load_dwordx4 v{V_DV+rb}, s[{S_X}:{S_X+3}], s{S_T} offen lds"]
            out.append((g, ("B", b)))
        return out

    def emit_group(self, grp):
        g, tag = grp
        for i in g: self.a(i)
        self.q.append(tag)

    def prologue(self):
        a, cfg = self.a, self.cfg
        xm = cfg.xcd_m; xn = 32 // xm; mg = 16 // xm
        if cfg.stamps:
            a("s_memrealtime s[96:97]")
        self.stamp(0)
        a(f"""
        s_cmp_ge_u32 s2, 256
        s_cbranch_scc1 L_done
        s_load_dwordx2 s[{S_X}:{S_X+1}], s[0:1], 0
        s_load_dwordx2 s[{S_W}:{S_W+1}], s[0:1], 8
        s_load_dwordx2 s[{S_SC}:{S_SC+1}], s[0:1], 16
        s_load_dwordx2 s[{S_ZE}:{S_ZE+1}], s[0:1], 24
        s_load_dwordx2 s[{S_O}:{S_O+1}], s[0:1], 40
        v_lshrrev_b32 v1, 6, v0
        v_and_b32 v0, 63, v0
        s_and_b32 s14, s2, 7
        v_readfirstlane_b32 s3, v1
        s_lshr_b32 s15, s2, 3
        s_and_b32 s16, s14, {mg-1}
        s_lshr_b32 s17, s14, {mg.bit_length()-1}
        s_mul_i32 s16, s16, {xm}
        s_mul_i32 s17, s17, {xn}
        s_and_b32 s18, s15, {xm-1}
        s_lshr_b32 s19, s15, {xm.bit_length()-1}
        s_add_u32 s16, s16, s18
        s_add_u32 s17, s17, s19
        s_mov_b32 s{S_X+2}, {X_BYTES}
        s_mov_b32 s{S_X+3}, 0x00020000
        s_mov_b32 s{S_W+2}, {QW_BYTES}
        s_mov_b32 s{S_W+3}, 0x00020000
        v_and_b32 v2, 15, v0
        v_lshrrev_b32 v3, 4, v0
        v_bfe_u32 v1, v0, 2, 3
        v_mul_u32_u24 v{V_DV}, 1152, v1
        v_lshrrev_b32 v1, 5, v0
        v_lshl_add_u32 v{V_DV}, v1, 6, v{V_DV}
        v_bfe_i32 v1, v0, 4, 1
        v_xor_b32 v1, v1, v0
        v_and_b32 v1, 3, v1
        v_lshl_add_u32 v{V_DV}, v1, 4, v{V_DV}
        v_xor_b32 v{V_DV+1}, 32, v{V_DV}
        v_mul_u32_u24 v{V_WA}, {QROW}, v3
        v_lshl_add_u32 v{V_WA}, v2, 3, v{V_WA}
        s_mul_i32 s{S_XB}, s16, {128*1152}
        s_mul_i32 s{S_T}, s3, {16*1152}
        s_add_u32 s{S_XB}, s{S_XB}, s{S_T}
        s_mul_i32 s19, s17, {288*4}
        s_lshl_b32 s{S_T}, s3, 7
        s_add_u32 s{S_WB}, s19, s{S_T}
        s_mul_i32 s{S_LW}, s3, {MT}
        s_mov_b32 s{S_SC+2}, {SZ_BYTES}
        s_mov_b32 s{S_SC+3}, 0x00020000
        s_mov_b32 s{S_ZE+2}, {SZ_BYTES}
        s_mov_b32 s{S_ZE+3}, 0x00020000
        s_mov_b32 s{S_O+2}, {OUT_BYTES}
        s_mov_b32 s{S_O+3}, 0x00020000
        s_mul_i32 s{S_NB}, s17, {288*2}
        s_mov_b32 s{S_MASK}, 0x000f000f
        s_mul_i32 s{S_OB}, s16, {128*ROWB}
        s_add_u32 s{S_OB}, s{S_OB}, s{S_NB}
        s_and_b32 s14, s3, 3
        s_and_b32 s15, s3, 4
        s_waitcnt lgkmcnt(0)
        """)
        self.stamp(1)
        for b in range(cfg.pre):
            for g in self.block_loads(b): self.emit_group(g)
        if cfg.warm:
            a("@@WARM@@")
        self.stamp(2)
        for b in range(cfg.pre, cfg.ahead):
            for g in self.block_loads(b): self.emit_group(g)
        a(f"""
        v_mov_b32 v{V_C43}, 0x43004300
        v_mov_b32 v{V_SH0}, 0x00040000
        v_mov_b32 v{V_SH1}, 0x000c0008
        v_mov_b32 v{V_K128}, 0x43000000
        v_mov_b32 v{V_ONE}, 0x3f803f80
        v_mov_b32 v{V_ONE+1}, 0x3f803f80
        v_mov_b32 v{V_ONE+2}, 0x3f803f80
        v_mov_b32 v{V_ONE+3}, 0x3f803f80
        v_mul_u32_u24 v{V_ST}, {ROWB}, v2
        v_lshl_add_u32 v{V_ST}, v3, 4, v{V_ST}
        v_lshrrev_b32 v1, 3, v2
        v_lshlrev_b32 v{V_LB}, 10, v1
        v_and_b32 v1, 7, v2
        v_lshl_add_u32 v{V_LB}, v1, 6, v{V_LB}
        v_lshrrev_b32 v1, 2, v2
        v_sub_u32 v1, 0, v1
        v_xor_b32 v1, v1, v3
        v_and_b32 v1, 3, v1
        v_lshl_add_u32 v{V_LB}, v1, 4, v{V_LB}
        v_lshrrev_b32 v1, 3, v0
        v_mul_u32_u24 v18, {QROW}, v1
        v_and_b32 v1, 7, v0
        v_lshl_add_u32 v18, v1, 4, v18
        v_lshlrev_b32 v19, 4, v0
        """)
        for u in range(4):
            a(f"""
            s_add_u32 s{S_T}, s14, {u}
            s_and_b32 s{S_T}, s{S_T}, 3
            s_add_u32 s{S_T}, s{S_T}, s15
            s_mul_i32 s{S_T+1}, s{S_T}, {MT}
            v_add_u32 v{V_XA+u}, s{S_T+1}, v{V_LB}
            s_mul_i32 s{S_OT+u}, s{S_T}, {16*ROWB}
            s_add_u32 s{S_OT+u}, s{S_OT+u}, s{S_OB}
            s_lshl_b32 s{S_T+1}, s3, 6
            s_add_u32 s{S_OT+u}, s{S_OT+u}, s{S_T+1}
            """)

    def extra_dma(self):
        g1 = [f"s_lshl_b32 s{S_T}, s3, 10",
              f"s_add_u32 m0, s{S_T}, {W8_OFF}",
              f"s_mul_i32 s{S_T}, s3, {8*QROW}",
              f"s_add_u32 s{S_T}, s{S_T}, s19",
              f"s_add_u32 s{S_T}, s{S_T}, 1024",
              f"buffer_load_dwordx4 v18, s[{S_W}:{S_W+3}], s{S_T} offen lds"]
        g2 = [f"s_mov_b32 m0, {W8_OFF + 8192}",
              f"s_add_u32 s{S_T}, s19, {64*QROW + 1024}",
              f"buffer_load_dwordx4 v18, s[{S_W}:{S_W+3}], s{S_T} offen lds"]
        g3 = [f"s_mov_b32 m0, {SC_OFF}",
              "s_nop 0",
              f"buffer_load_dwordx4 v19, s[{S_SC}:{S_SC+3}], s{S_NB} offen lds"]
        g4 = [f"s_mov_b32 m0, {ZE_OFF}",
              "s_nop 0",
              f"buffer_load_dwordx4 v19, s[{S_ZE}:{S_ZE+3}], s{S_NB} offen lds"]
        return g1, g2, g3, g4

    def phase1(self):
        a, cfg = self.a, self.cfg
        AH = cfg.ahead
        self.wait_vm(("B", 0))
        a("s_barrier")
        self.stamp(3)
        NR, PF = 6, 4
        def rd(f):
            ks, u = f // 4, f % 4
            r = V_XF + 4 * (f % NR)
            a(f"ds_read_b128 v[{r}:{r+3}], v{V_XA+u} offset:{xoff(ks)}")
        for f in range(PF): rd(f)
        for i in dequant2(V_W): a(i)
        a("s_nop 0")
        g1, g2, g3, g4 = self.extra_dma()
        for ks in range(18):
            j, half = ks >> 1, ks & 1
            if half == 1 and j + 1 < 9:
                self.wait_vm(("B", j + 1))
                a("s_barrier")
            fill = dequant2(V_W + 8 * (ks + 1)) if ks < 17 else []
            loads = self.block_loads(j + AH)[2*half:2*half+2] if j + AH < 9 else []
            if j + AH == 9 and half == 0:
                loads = [(g1, ("X", 0))]
                a(f"s_cmp_gt_u32 s3, 2\ns_cbranch_scc1 L_x3\ns_cmp_eq_u32 s3, 1\ns_cbranch_scc1 L_x1\ns_cmp_eq_u32 s3, 2\ns_cbranch_scc1 L_x2")
                for i in g2: a(i)
                a("s_branch L_x3\nL_x1:")
                for i in g3: a(i)
                a("s_branch L_x3\nL_x2:")
                for i in g4: a(i)
                a("L_x3:")
                self.extra_uncounted = True
            F = V_W + 8 * ks
            for u in range(4):
                f = 4 * ks + u
                x = V_XF + 4 * (f % NR)
                a(f"s_waitcnt lgkmcnt({min(PF - 1, 71 - f)})")
                a(mfma(V_ACC + 8 * u, F, x, first=(ks == 0)))
                for i in fill[(0, 6, 12, 16)[u]:(3, 9, 14, 16)[u]]: a(i)
                a(mfma(V_ACC + 8 * u + 4, F + 4, x, first=(ks == 0)))
                if f + PF < 72: rd(f + PF)
                for i in fill[(3, 9, 14, 16)[u]:(6, 12, 16, 16)[u]]: a(i)
                if u == 0 and not cfg.nors:
                    a(mfma(V_RS, V_ONE, x, first=(ks == 0)))
                if u == 3:
                    for g in loads: self.emit_group(g)
                self.pad()
        self.stamp(4)
        a(f"""
        s_lshl_b32 s{S_T}, s3, 6
        s_add_u32 s{S_T}, s{S_T}, {R_OFF}
        v_lshlrev_b32 v1, 2, v2
        v_add_u32 v17, s{S_T}, v1
        s_add_u32 s{S_T}, s{S_T}, {SC_OFF - R_OFF}
        v_lshlrev_b32 v18, 4, v3
        v_add_u32 v18, s{S_T}, v18
        ds_write_b32 v17, v{V_RS}
        s_waitcnt vmcnt(0) lgkmcnt(0)
        s_barrier
        ds_read_b128 v[{V_XF}:{V_XF+3}], v18
        ds_read_b128 v[{V_XF+4}:{V_XF+7}], v18 offset:1024
        """)
        for u in range(4):
            a(f"""
            s_add_u32 s{S_T}, s14, {u}
            s_and_b32 s{S_T}, s{S_T}, 3
            s_add_u32 s{S_T}, s{S_T}, s15
            s_lshl_b32 s{S_T}, s{S_T}, 6
            s_add_u32 s{S_T}, s{S_T}, {R_OFF}
            v_add_u32 v17, s{S_T}, v1
            ds_read_b32 v{V_R+u}, v17
            """)
        a(f"""
        s_xor_b32 s15, s15, 4
        s_lshl_b32 s{S_T}, s15, 6
        s_add_u32 s{S_T}, s{S_T}, {R_OFF}
        v_add_u32 v17, s{S_T}, v1
        """)
        for u in range(4):
            a(f"ds_read_b32 v{V_R+4+u}, v17 offset:{64*u}")
        a(f"""
        s_mul_i32 s{S_T+1}, s15, {MT}
        v_add_u32 v{V_XA}, s{S_T+1}, v{V_LB}
        s_mul_i32 s{S_T+2}, s15, {16*ROWB}
        s_add_u32 s{S_T+2}, s{S_T+2}, s{S_OB}
        s_lshl_b32 s{S_T+1}, s3, 6
        s_add_u32 s{S_T+2}, s{S_T+2}, s{S_T+1}
        s_waitcnt lgkmcnt(8)
        """)
        self.stamp(5)
        for i in unpack_consts(V_XF, V_XF + 4, V_S, V_C): a(i)
        a("s_waitcnt lgkmcnt(0)")
        self.pad()
        for u in range(2):
            for i in epilogue(V_ACC + 8 * u, V_S, V_C, V_R + u, V_TMP, S_OT + u, cfg): a(i)
            self.pad()
        self.stamp(6)
        a("s_cmp_ge_u32 s3, 4\ns_cbranch_scc1 L_wstat")

    def n8_job(self):
        a, cfg = self.a, self.cfg
        if cfg.prio: a("s_setprio 1")
        ACC8 = V_ACC
        WF = [V_ONE, V_XF + 16]
        PK = [V_TMP, V_TMP + 2]
        XA8, WA8 = V_XA + 1, V_XA + 2
        a(f"""
        s_mul_i32 s{S_T+1}, s14, {2*MT}
        v_add_u32 v{XA8}, s{S_T+1}, v{V_LB}
        v_lshlrev_b32 v{WA8}, 3, v0
        v_add_u32 v{WA8}, {W8_OFF}, v{WA8}
        s_lshl_b32 s{S_T}, s14, 7
        s_add_u32 s{S_T}, s{S_T}, {R_OFF}
        v_add_u32 v17, s{S_T}, v1
        ds_read_b64 v[{PK[0]}:{PK[0]+1}], v{WA8}
        ds_read_b64 v[{PK[1]}:{PK[1]+1}], v{WA8} offset:512
        ds_read_b32 v18, v17
        ds_read_b32 v19, v17 offset:64
        ds_read_b128 v[{V_XF}:{V_XF+3}], v{XA8}
        ds_read_b128 v[{V_XF+4}:{V_XF+7}], v{XA8} offset:{MT}
        """)
        for r in range(16):
            a(f"v_mov_b32 v{ACC8+r}, 0")
        a("s_waitcnt lgkmcnt(5)")
        for i in dequant2(WF[0], PK[0], PK[0] + 1): a(i)
        a(f"s_mov_b32 s{S_T}, 0")
        a("L_n8:")
        self.pad()
        for h in range(2):
            cur, nxt = WF[h], WF[1 - h]
            xc, xn = V_XF + 8 * h, V_XF + 8 * (1 - h)
            noff = 512 if h == 0 else 2048
            fill = dequant2(nxt, PK[1 - h], PK[1 - h] + 1)
            a(f"ds_read_b64 v[{PK[h]}:{PK[h]+1}], v{WA8} offset:{1024 + 512*h}")
            a(f"ds_read_b128 v[{xn}:{xn+3}], v{XA8} offset:{noff}")
            a(f"ds_read_b128 v[{xn+4}:{xn+7}], v{XA8} offset:{MT + noff}")
            a("s_waitcnt lgkmcnt(3)")
            k = 0
            for u in range(2):
                for t in range(2):
                    a(mfma(ACC8 + 8 * u + 4 * t, cur + 4 * t, xc + 4 * u))
                    for i in fill[4*k:4*k+4]: a(i)
                    k += 1
        a(f"""
        v_add_u32 v{XA8}, 2048, v{XA8}
        v_add_u32 v{WA8}, 1024, v{WA8}
        s_add_u32 s{S_T}, s{S_T}, 1
        s_cmp_lt_u32 s{S_T}, 9
        s_cbranch_scc1 L_n8
        """)
        self.stamp(7)
        S8, C8 = V_XF + 8, V_XF + 16
        a(f"""
        v_lshlrev_b32 v17, 4, v3
        v_add_u32 v17, {SC_OFF + 512}, v17
        s_waitcnt lgkmcnt(0)
        ds_read_b128 v[{V_XF}:{V_XF+3}], v17
        ds_read_b128 v[{V_XF+4}:{V_XF+7}], v17 offset:1024
        s_mul_i32 s{S_OT}, s14, {32*ROWB}
        s_add_u32 s{S_OT}, s{S_OT}, s{S_OB}
        s_add_u32 s{S_OT}, s{S_OT}, 512
        s_add_u32 s{S_OT+1}, s{S_OT}, {16*ROWB}
        s_waitcnt lgkmcnt(0)
        """)
        for i in unpack_consts(V_XF, V_XF + 4, S8, C8): a(i)
        self.pad()
        for u in range(2):
            for i in epilogue(ACC8 + 8 * u, S8, C8, 18 + u, V_TMP, S_OT + u, cfg): a(i)
            self.pad()

    def wstat_jobs(self):
        a, cfg = self.a, self.cfg
        a("L_wstat:")
        fill = []
        for u in range(2, 4):
            fill += epilogue(V_ACC + 8 * u, V_S, V_C, V_R + u, V_TMP, S_OT + u, cfg)
        ACCS = [V_ONE, V_XF + 16]
        XR = V_XF
        total = 72
        st = {"b": False}
        def rd(p):
            t, ks = p // 18, p % 18
            off = t * MT + xoff(ks)
            if off >= 65536 - 1024 and not st["b"]:
                a(f"v_add_u32 v{V_XA}, {2*MT}, v{V_XA}")
                st["b"] = True
            if st["b"]: off -= 2 * MT
            a(f"ds_read_b128 v[{XR+4*(p%4)}:{XR+4*(p%4)+3}], v{V_XA} offset:{off}")
        for p in range(3): rd(p)
        def take(n):
            while fill and n > 0:
                i = fill.pop(0); a(i)
                if not i.startswith("s_"): n -= 1
        for p in range(total):
            t, ks = p // 18, p % 18
            acc = ACCS[t & 1]
            if p + 3 < total: rd(p + 3)
            a(f"s_waitcnt lgkmcnt({min(3, total-1-p)})")
            x = XR + 4 * (p % 4)
            a(mfma(acc, V_W + 8 * ks, x, first=(ks == 0)))
            if ks == 2 and t > 0:
                fill.append(f"s_add_u32 s{S_T+3}, s{S_T+2}, {(t-1)*16*ROWB}")
                fill += epilogue(ACCS[(t - 1) & 1], V_S, V_C, V_R + 4 + t - 1, V_TMP, S_T + 3, cfg)
            take(2)
            a(mfma(acc + 4, V_W + 8 * ks + 4, x, first=(ks == 0)))
            take(1)
            self.pad()
            if ks == 17: assert not fill
        self.stamp(8)
        a(f"s_add_u32 s{S_T+3}, s{S_T+2}, {3*16*ROWB}\ns_nop 7")
        for i in epilogue(ACCS[1], V_S, V_C, V_R + 7, V_TMP, S_T + 3, cfg): a(i)
        self.stamp(9)

    def finish(self):
        a, cfg = self.a, self.cfg
        if cfg.stamps:
            a(f"""
            s_waitcnt vmcnt(0)
            {"s_memtime" if cfg.stamps == 1 else "s_memrealtime"} s[{S_STAMP+22}:{S_STAMP+23}]
            s_memrealtime s[98:99]
            s_load_dwordx2 s[40:41], s[0:1], 56
            s_waitcnt lgkmcnt(0)
            s_mov_b32 s44, s40
            s_and_b32 s45, s41, 0xffff
            s_mov_b32 s46, 0x100000
            s_mov_b32 s47, 0x00020000
            s_lshl_b32 s48, s2, 3
            s_add_u32 s48, s48, s3
            s_lshl_b32 s48, s48, 6
            v_mov_b32 v2, s48
            v_mov_b32 v4, s96
            s_getreg_b32 s49, hwreg(HW_REG_XCC_ID)
            v_mov_b32 v5, s49
            s_getreg_b32 s49, hwreg(HW_REG_HW_ID)
            v_mov_b32 v6, s49
            v_mov_b32 v7, s98
            v_cmp_eq_u32 vcc, 0, v0
            s_and_saveexec_b64 s[50:51], vcc
            buffer_store_dwordx4 v[4:7], v2, s[44:47], 0 offen
            s_nop 1
            """)
            for qd in range(3):
                for j in range(4):
                    a(f"v_mov_b32 v{4+j}, s{S_STAMP+2*(4*qd+j)}")
                a(f"buffer_store_dwordx4 v[4:7], v2, s[44:47], 0 offen offset:{16+16*qd}")
                a("s_nop 1")
        a("L_done:")

def resolve(lines, cfg):
    if not cfg.warm: return lines
    off = 0; last = 0; chosen = []
    for i, l in enumerate(lines):
        s = l.strip()
        if s == "@@PAD@@":
            if off - last >= cfg.padsp - 64:
                chosen.append(i); last = off; off += 4
        else:
            off += isize(l)
    npad = len(chosen)
    name = {idx: k for k, idx in enumerate(chosen)}
    out = []
    for i, l in enumerate(lines):
        s = l.strip()
        if s == "@@PAD@@":
            if i in name:
                k = name[i]
                out.append(f"L_pad{k}:")
                out.append(f"    s_cbranch_execz {'L_pad%d' % (k+8) if k + 8 < npad else 'L_wret'}")
        elif s == "@@WARM@@":
            out.append("    s_mov_b64 exec, 0")
            for w in range(min(8, npad)):
                out.append(f"    s_cmp_eq_u32 s3, {w}")
                out.append(f"    s_cbranch_scc1 L_pad{w}")
            out.append("L_wret:")
            out.append("    s_mov_b64 exec, -1")
        else:
            out.append(l)
    return out

def build(cfg, fname):
    g = Gen(cfg)
    g.prologue(); g.phase1(); g.n8_job(); g.wstat_jobs(); g.finish()
    lines = resolve([l for l in g.a.lines if l.strip()], cfg)
    open(fname, "w").write(wrap("\n".join(lines) + "\n", 256, 512, LDS_BYTES, 256, 256))

if __name__ == "__main__":
    cfg = Cfg()
    for kv in sys.argv[2:]:
        k, v = kv.split("=")
        setattr(cfg, k, int(v) if v.lstrip("-").isdigit() else v.replace("+", " "))
    build(cfg, sys.argv[1])
```

```python
import sys, re
from common import *
from k1 import isize

class Cfg:
    xcd_m = 4
    stamps = 0
    st_flags = "sc1"
    ahead = 3
    pre = 1
    n8trip = 1
    warm = 3
    rbar = 3
    prio8 = 0
    touch = 0
    fine = 0
    sync0 = 1

MT, RG = 18432, 9216
R_OFF = 8 * MT
W8_OFF = R_OFF + 512
SC_OFF = W8_OFF + 9216
ZE_OFF = SC_OFF + 1024
LDS_BYTES = ZE_OFF + 1024
ROWB, QROW = N * 2, N * 4

S_X, S_W, S_SC, S_ZE, S_O = 20, 24, 28, 32, 36
S_XB, S_WB, S_TRIP, S_TILE, S_OPREV, S_OCUR, S_OP, S_TP, S_IT, S_TPREV = 40, 41, 42, 43, 44, 45, 46, 47, 48, 49
S_O8 = 50
S_T = 58
S_MASK, S_OB, S_LW, S_NB = 64, 65, 66, 67
S_STAMP = 72

V_DV, V_WA, V_ST, V_C43, V_SH0, V_SH1, V_K128, V_LB = 4, 6, 7, 8, 9, 10, 11, 12
V_XA = 13
V_RB = 15
V_ACA, V_ACB = 20, 28
V_S, V_C = 36, 44
V_TMP = 52
V_R = 56
V_G = 60
V_W = 112

def mfma(d, a_, b, first=False):
    c = "0" if first else f"v[{d}:{d+3}]"
    return f"v_mfma_f32_16x16x32_bf16 v[{d}:{d+3}], v[{a_}:{a_+3}], v[{b}:{b+3}], {c}"

def dequant2(F, w0=None, w1=None):
    if w0 is None: w0, w1 = F + 6, F + 7
    out = []
    for base, w in ((F, w0), (F + 4, w1)):
        out += [
            f"v_pk_lshrrev_b16 v{base}, v{V_SH0}, v{w} op_sel:[0,0] op_sel_hi:[1,0]",
            f"v_pk_lshrrev_b16 v{base+1}, v{V_SH1}, v{w} op_sel:[0,0] op_sel_hi:[1,0]",
            f"v_pk_lshrrev_b16 v{base+2}, v{V_SH0}, v{w} op_sel:[0,1] op_sel_hi:[1,1]",
            f"v_pk_lshrrev_b16 v{base+3}, v{V_SH1}, v{w} op_sel:[0,1] op_sel_hi:[1,1]",
        ]
        out += [f"v_and_or_b32 v{base+i}, v{base+i}, s{S_MASK}, v{V_C43}" for i in range(4)]
    return out

def unpack_consts(raw_s, raw_z, S, C):
    out = []
    for r in range(4):
        out.append(f"v_lshlrev_b32 v{S+r}, 16, v{raw_s+r}")
        out.append(f"v_and_b32 v{S+4+r}, 0xffff0000, v{raw_s+r}")
        out.append(f"v_lshlrev_b32 v{C+r}, 16, v{raw_z+r}")
        out.append(f"v_and_b32 v{C+4+r}, 0xffff0000, v{raw_z+r}")
        out.append(f"v_add_f32 v{C+r}, v{V_K128}, v{C+r}")
        out.append(f"v_add_f32 v{C+4+r}, v{V_K128}, v{C+4+r}")
    return out

def epilogue(acc, S, C, R, tmp, s_off, cfg):
    out = []
    for r in range(8):
        out.append(f"v_fma_f32 v{acc+r}, -v{C+r}, v{R}, v{acc+r}")
    for r in range(8):
        out.append(f"v_mul_f32 v{acc+r}, v{S+r}, v{acc+r}")
    for r in range(4):
        out.append(f"v_cvt_pk_bf16_f32 v{tmp+r}, v{acc+r}, v{acc+4+r}")
    out.append(f"buffer_store_dwordx4 v[{tmp}:{tmp+3}], v{V_ST}, s[{S_O}:{S_O+3}], s{s_off} offen {cfg.st_flags}")
    return out

class Gen:
    def __init__(self, cfg):
        self.cfg = cfg
        self.a = Asm()
        self.q = []

    def stamp(self, i):
        if self.cfg.fine and getattr(self, "late", False) and i in (5, 6, 7, 8, 9, 10): return
        if self.cfg.stamps:
            op = "s_memtime" if self.cfg.stamps == 1 else "s_memrealtime"
            self.a(f"{op} s[{S_STAMP+2*i}:{S_STAMP+2*i+1}]")

    def pad(self):
        self.a("@@PAD@@")

    def wait_vm(self, tag):
        idx = max(i for i, t in enumerate(self.q) if t == tag)
        self.a(f"s_waitcnt vmcnt({len(self.q) - 1 - idx})")

    def block_loads(self, b):
        out = []
        for h in range(2):
            ks = 2 * b + h
            F = V_W + 8 * ks
            out.append(([f"s_add_u32 s{S_T+1}, s{S_WB}, {4*ks*QROW}",
                         f"buffer_load_dwordx2 v[{F+6}:{F+7}], v{V_WA}, s[{S_W}:{S_W+3}], s{S_T+1} offen"], ("W", ks)))
        for rg in range(2):
            out.append(([f"s_add_u32 m0, s{S_LW}, {rg*RG + b*1024}",
                         f"s_add_u32 s{S_T}, s{S_XB}, {rg*8*1152 + b*128}",
                         f"buffer_load_dwordx4 v{V_DV+rg}, s[{S_X}:{S_X+3}], s{S_T} offen lds"], ("D", b)))
        return out

    def emit_group(self, grp):
        for i in grp[0]: self.a(i)
        self.q.append(grp[1])

    def tile_setup(self, s_tile, v_addr, s_out):
        return [f"s_mul_i32 s{S_T+2}, s{s_tile}, {MT}",
                f"v_add_u32 v{v_addr}, s{S_T+2}, v{V_LB}",
                f"s_mul_i32 s{s_out}, s{s_tile}, {16*ROWB}",
                f"s_add_u32 s{s_out}, s{s_out}, s{S_OB}"]

    def prologue(self):
        a, cfg = self.a, self.cfg
        xm = cfg.xcd_m; xn = 32 // xm; mg = 16 // xm
        if cfg.stamps:
            a("s_memrealtime s[96:97]")
        self.stamp(0)
        a(f"""
        s_cmp_ge_u32 s2, 256
        s_cbranch_scc1 L_done
        s_load_dwordx2 s[{S_X}:{S_X+1}], s[0:1], 0
        s_load_dwordx2 s[{S_W}:{S_W+1}], s[0:1], 8
        s_load_dwordx2 s[{S_SC}:{S_SC+1}], s[0:1], 16
        s_load_dwordx2 s[{S_ZE}:{S_ZE+1}], s[0:1], 24
        s_load_dwordx2 s[{S_O}:{S_O+1}], s[0:1], 40
        v_lshrrev_b32 v1, 6, v0
        v_and_b32 v0, 63, v0
        s_and_b32 s14, s2, 7
        v_readfirstlane_b32 s3, v1
        s_lshr_b32 s15, s2, 3
        s_and_b32 s16, s14, {mg-1}
        s_lshr_b32 s17, s14, {mg.bit_length()-1}
        s_mul_i32 s16, s16, {xm}
        s_mul_i32 s17, s17, {xn}
        s_and_b32 s18, s15, {xm-1}
        s_lshr_b32 s19, s15, {xm.bit_length()-1}
        s_add_u32 s16, s16, s18
        s_add_u32 s17, s17, s19
        s_mov_b32 s{S_X+2}, {X_BYTES}
        s_mov_b32 s{S_X+3}, 0x00020000
        s_mov_b32 s{S_W+2}, {QW_BYTES}
        s_mov_b32 s{S_W+3}, 0x00020000
        v_and_b32 v2, 15, v0
        v_lshrrev_b32 v3, 4, v0
        v_bfe_u32 v1, v0, 2, 3
        v_mul_u32_u24 v{V_DV}, 1152, v1
        v_lshrrev_b32 v1, 5, v0
        v_lshl_add_u32 v{V_DV}, v1, 6, v{V_DV}
        v_bfe_i32 v1, v0, 4, 1
        v_xor_b32 v1, v1, v0
        v_and_b32 v1, 3, v1
        v_lshl_add_u32 v{V_DV}, v1, 4, v{V_DV}
        v_xor_b32 v{V_DV+1}, 32, v{V_DV}
        v_mul_u32_u24 v{V_WA}, {QROW}, v3
        v_lshl_add_u32 v{V_WA}, v2, 3, v{V_WA}
        s_mul_i32 s{S_XB}, s16, {128*1152}
        s_mul_i32 s{S_T}, s3, {16*1152}
        s_add_u32 s{S_XB}, s{S_XB}, s{S_T}
        s_mul_i32 s19, s17, {288*4}
        s_lshl_b32 s{S_T}, s3, 7
        s_add_u32 s{S_WB}, s19, s{S_T}
        s_mul_i32 s{S_LW}, s3, {MT}
        s_mov_b32 s{S_SC+2}, {SZ_BYTES}
        s_mov_b32 s{S_SC+3}, 0x00020000
        s_mov_b32 s{S_ZE+2}, {SZ_BYTES}
        s_mov_b32 s{S_ZE+3}, 0x00020000
        s_mov_b32 s{S_O+2}, {OUT_BYTES}
        s_mov_b32 s{S_O+3}, 0x00020000
        s_mul_i32 s{S_NB}, s17, {288*2}
        s_mov_b32 s{S_MASK}, 0x000f000f
        s_mul_i32 s{S_OB}, s16, {128*ROWB}
        s_add_u32 s{S_OB}, s{S_OB}, s{S_NB}
        s_and_b32 s14, s3, 3
        v_mul_u32_u24 v{V_ST}, {ROWB}, v2
        v_lshl_add_u32 v{V_ST}, v3, 4, v{V_ST}
        v_lshrrev_b32 v1, 3, v2
        v_mul_u32_u24 v{V_LB}, {RG}, v1
        v_and_b32 v1, 7, v2
        v_lshl_add_u32 v{V_LB}, v1, 6, v{V_LB}
        v_lshrrev_b32 v1, 2, v2
        v_sub_u32 v1, 0, v1
        v_xor_b32 v1, v1, v3
        v_and_b32 v1, 3, v1
        v_lshl_add_u32 v{V_LB}, v1, 4, v{V_LB}
        v_mov_b32 v{V_XA}, v{V_LB}
        v_mov_b32 v{V_XA+1}, v{V_LB}
        v_lshlrev_b32 v{V_RB}, 2, v2
        v_add_u32 v{V_RB}, {R_OFF}, v{V_RB}
        v_mov_b32 v16, v{V_RB}
        v_mov_b32 v17, v{V_RB}
        s_waitcnt lgkmcnt(0)
        """)
        self.stamp(1)
        for b in range(cfg.pre):
            bl = self.block_loads(b)
            for g in bl[2:] + bl[:2]: self.emit_group(g)
        if cfg.sync0: a("s_barrier")
        if cfg.touch == 3:
            a(f"""
            s_lshl_b32 s{S_T}, s3, 3
            v_add_u32 v16, s{S_T}, v0
            v_add_u32 v16, 8, v16
            v_mul_u32_u24 v16, {QROW}, v16
            v_cmp_gt_u32 vcc, 8, v0
            s_mov_b64 exec, vcc
            buffer_load_dword v58, v16, s[{S_W}:{S_W+3}], s19 offen
            s_mov_b64 exec, -1
            v_mov_b32 v16, v{V_RB}
            """)
            self.q += [("T", 0)]
        elif cfg.touch:
            xr = max(1, 128 // xn // 4); wr = -(-72 // xm // 4)
            assert xr <= 7 and wr <= 14
            a(f"""
            v_mul_u32_u24 v16, 0x1c72, v0
            v_lshrrev_b32 v16, 16, v16
            v_mul_u32_u24 v17, 9, v16
            v_sub_u32 v17, v0, v17
            v_lshlrev_b32 v17, 7, v17
            s_cmp_ge_u32 s3, 4
            s_cbranch_scc1 L_tw
            v_mul_u32_u24 v16, 1152, v16
            v_add_u32 v16, v16, v17
            v_cmp_gt_u32 vcc, {9*xr if cfg.touch == 1 else 1}, v0
            s_and_b32 s{S_T}, s17, {xn-1}
            s_lshl_b32 s{S_T}, s{S_T}, 2
            s_add_u32 s{S_T}, s{S_T}, s14
            s_mul_i32 s{S_T}, s{S_T}, {xr*1152}
            s_mul_i32 s{S_T+1}, s16, {128*1152}
            s_add_u32 s{S_T}, s{S_T}, s{S_T+1}
            s_mov_b64 exec, vcc
            buffer_load_dword v58, v16, s[{S_X}:{S_X+3}], s{S_T} offen
            {"buffer_load_dword v59, v16, s[%d:%d], s%d offen" % (S_X, S_X+3, S_T) if wr > 7 else ""}
            s_branch L_tx
            L_tw:
            v_mul_u32_u24 v16, {QROW}, v16
            v_add_u32 v16, v16, v17
            v_cmp_gt_u32 vcc, {9*min(wr,7)}, v0
            s_and_b32 s{S_T}, s16, {xm-1}
            s_lshl_b32 s{S_T}, s{S_T}, 2
            s_add_u32 s{S_T}, s{S_T}, s14
            s_mul_i32 s{S_T}, s{S_T}, {wr*QROW}
            s_add_u32 s{S_T}, s{S_T}, s19
            s_mov_b64 exec, vcc
            buffer_load_dword v58, v16, s[{S_W}:{S_W+3}], s{S_T} offen
            {"s_add_u32 s%d, s%d, %d" % (S_T, S_T, (wr-7)*QROW) if wr > 7 else ""}
            {"buffer_load_dword v59, v16, s[%d:%d], s%d offen" % (S_W, S_W+3, S_T) if wr > 7 else ""}
            L_tx:
            s_mov_b64 exec, -1
            v_mov_b32 v16, v{V_RB}
            v_mov_b32 v17, v{V_RB}
            """)
            self.q += [("T", 0)] * (2 if wr > 7 else 1)
        a("@@WARM@@")
        self.stamp(2)
        for b in range(cfg.pre, cfg.ahead):
            for g in self.block_loads(b): self.emit_group(g)
        a(f"""
        s_mul_i32 s{S_O8}, s14, {32*ROWB}
        s_add_u32 s{S_O8}, s{S_O8}, s{S_OB}
        s_add_u32 s{S_O8}, s{S_O8}, 512
        s_add_u32 s{S_O8+1}, s{S_O8}, {16*ROWB}
        s_lshl_b32 s{S_T}, s3, 6
        s_add_u32 s{S_OB}, s{S_OB}, s{S_T}
        v_mov_b32 v{V_C43}, 0x43004300
        v_mov_b32 v{V_SH0}, 0x00040000
        v_mov_b32 v{V_SH1}, 0x000c0008
        v_mov_b32 v{V_K128}, 0x43000000
        v_lshrrev_b32 v1, 3, v0
        v_mul_u32_u24 v18, {QROW}, v1
        v_and_b32 v1, 7, v0
        v_lshl_add_u32 v18, v1, 4, v18
        v_lshlrev_b32 v19, 4, v0
        s_lshl_b32 s{S_TP}, s14, 1
        s_lshr_b32 s{S_T}, s3, 2
        s_add_u32 s{S_TP}, s{S_TP}, s{S_T}
        s_add_u32 s{S_TPREV}, s{S_TP}, 1
        s_and_b32 s{S_TPREV}, s{S_TPREV}, 7
        s_mov_b32 s{S_TRIP}, 0
        """)
        for i in self.tile_setup(S_TP, V_XA, S_OP): a(i)
        for i in self.tile_setup(S_TPREV, V_XA + 1, S_OPREV): a(i)

    def phase1(self):
        a, cfg = self.a, self.cfg
        AH = cfg.ahead
        ONE, RS, ACP, XF = V_G, V_G + 4, V_G + 8, V_G + 16
        self.ACP, self.RS = ACP, RS
        ACC = [ACP, V_ACB]
        for i in range(4): a(f"v_mov_b32 v{ONE+i}, 0x3f803f80")
        if cfg.stamps and cfg.fine:
            self.stamp(5)
            self.wait_vm(("D", 0))
            self.stamp(7)
        self.wait_vm(("D", 0))
        a("s_barrier")
        self.stamp(3)
        self.needw = True
        NR, PF = 6, 2
        def rd(f):
            ks, u = f // 2, f % 2
            r = XF + 4 * (f % NR)
            return f"ds_read_b128 v[{r}:{r+3}], v{V_XA+u} offset:{ks*512}"
        for f in range(PF): a(rd(f))
        self.wait_vm(("W", 1))
        for i in dequant2(V_W): a(i)
        dq = dequant2(V_W + 8)
        for i in dq[:8]: a(i)
        carry = dq[8:]
        g1 = [f"s_lshl_b32 s{S_T}, s3, 10", f"s_add_u32 m0, s{S_T}, {W8_OFF}", f"s_mul_i32 s{S_T}, s3, {8*QROW}",
              f"s_add_u32 s{S_T}, s{S_T}, s19", f"s_add_u32 s{S_T}, s{S_T}, 1024",
              f"buffer_load_dwordx4 v18, s[{S_W}:{S_W+3}], s{S_T} offen lds"]
        for ks in range(18):
            j, half = ks >> 1, ks & 1
            if half == 1 and j + 1 < 9:
                self.wait_vm(("D", j + 1))
                a("s_barrier")
                if cfg.fine and j in (0, 2, 5): self.stamp({0: 8, 2: 9, 5: 10}[j])
            nxt = dequant2(V_W + 8 * (ks + 2)) if ks + 2 < 18 else []
            pool = carry + ([("W", ks + 2)] if nxt else []) + nxt[:8]
            carry = nxt[8:]
            loads = []
            if j + AH < 9:
                bl = self.block_loads(j + AH)
                loads = [bl[half], bl[2 + half]]
            elif j + AH == 9 and half == 0:
                loads = [(g1, ("X", 0))]
                a(f"""
                s_cmp_gt_u32 s3, 2
                s_cbranch_scc1 L_x3
                s_cmp_eq_u32 s3, 1
                s_cbranch_scc1 L_x1
                s_cmp_eq_u32 s3, 2
                s_cbranch_scc1 L_x2
                s_mov_b32 m0, {W8_OFF + 8192}
                s_add_u32 s{S_T}, s19, {64*QROW + 1024}
                buffer_load_dwordx4 v18, s[{S_W}:{S_W+3}], s{S_T} offen lds
                s_branch L_x3
                L_x1:
                s_mov_b32 m0, {SC_OFF}
                s_nop 0
                buffer_load_dwordx4 v19, s[{S_SC}:{S_SC+3}], s{S_NB} offen lds
                s_branch L_x3
                L_x2:
                s_mov_b32 m0, {ZE_OFF}
                s_nop 0
                buffer_load_dwordx4 v19, s[{S_ZE}:{S_ZE+3}], s{S_NB} offen lds
                L_x3:
                """)
            F = V_W + 8 * ks
            x0, x1 = XF + 4 * ((2 * ks) % NR), XF + 4 * ((2 * ks + 1) % NR)
            fst = ks == 0
            reads = [rd(2 * ks + 2), rd(2 * ks + 3)] if ks < 17 else []
            slots = [([f"s_waitcnt lgkmcnt(0)", mfma(ACC[0], F, x0, fst)], reads[:1]),
                     ([mfma(ACC[0] + 4, F + 4, x0, fst)], reads[1:]),
                     ([mfma(RS, ONE, x0, fst)], []),
                     ([mfma(ACC[1], F, x1, fst)], []),
                     ([mfma(ACC[1] + 4, F + 4, x1, fst)], [])]
            nl = len(loads)
            total = sum(1 for x in pool if isinstance(x, str)) + nl + len(reads)
            done = 0
            lpos = {2: 0, 4: 1}
            def pop():
                x = pool.pop(0)
                if isinstance(x, tuple):
                    self.wait_vm(x); x = pool.pop(0)
                a(x)
            for i, (pre, forced) in enumerate(slots):
                for x in pre: a(x)
                for x in forced: a(x); done += 1
                target = total * (i + 1) / len(slots) - (1 if i in lpos and lpos[i] < nl else 0)
                while pool and done + 0.5 <= target:
                    pop(); done += 1
                if i in lpos and lpos[i] < nl:
                    self.emit_group(loads[lpos[i]]); done += 1
                self.pad()
            while pool: pop()
        self.stamp(4)

    def jobs(self):
        a, cfg = self.a, self.cfg
        self.late = True
        XR = V_G + 16
        RAW = V_G + 32
        a(f"""
        s_add_u32 s{S_TILE}, s{S_TPREV}, 1
        s_and_b32 s{S_TILE}, s{S_TILE}, 7
        """)
        for i in self.tile_setup(S_TILE, V_XA, S_OCUR): a(i)
        a(f"""
        s_lshl_b32 s{S_T}, s{S_TP}, 6
        v_add_u32 v16, s{S_T}, v{V_RB}
        s_nop 2
        ds_write_b32 v16, v{self.RS}
        """)
        a("L_late:")
        a("L_pref:")
        for p in range(3):
            a(f"ds_read_b128 v[{XR+4*p}:{XR+4*p+3}], v{V_XA} offset:{512*p}")
        a("L_trip:")
        self.pad()
        for jb in range(2):
            acc, prev = (V_ACA, V_ACB) if jb == 0 else (V_ACB, V_ACA)
            va, vn = V_XA + jb, V_XA + 1 - jb
            RB = cfg.rbar
            fill = epilogue(prev, V_S, V_C, V_R, V_TMP, S_OPREV, cfg)
            for ks in range(18):
                p = 18 * jb + ks
                q = ks + 3
                skipwait = False
                if jb == 0 and ks == RB:
                    a(f"""
                    s_cmp_lg_u32 s{S_TRIP}, 0
                    s_cbranch_scc1 L_nr
                    s_lshl_b32 s{S_T}, s3, 6
                    s_add_u32 s{S_T}, s{S_T}, {SC_OFF}
                    v_lshlrev_b32 v17, 4, v3
                    v_add_u32 v17, s{S_T}, v17
                    s_waitcnt vmcnt(0) lgkmcnt(0)
                    s_barrier
                    ds_read_b128 v[{RAW}:{RAW+3}], v17
                    ds_read_b128 v[{RAW+4}:{RAW+7}], v17 offset:1024
                    s_waitcnt lgkmcnt(0)
                    """)
                    for i in unpack_consts(RAW, RAW + 4, V_S, V_C): a(i)
                    self.stamp(5)
                    a("L_nr:")
                if ks == RB:
                    a(f"s_lshl_b32 s{S_T}, s{S_TPREV}, 6")
                    a(f"v_add_u32 v16, s{S_T}, v{V_RB}")
                    a(f"ds_read_b32 v{V_R}, v16")
                if ks == 12:
                    a(f"s_add_u32 s{S_T+3}, s{S_TILE}, 1\ns_and_b32 s{S_T+3}, s{S_T+3}, 7\ns_mul_i32 s{S_T+2}, s{S_T+3}, {MT}")
                    a(f"v_add_u32 v{vn}, s{S_T+2}, v{V_LB}")
                r = XR + 4 * ((p + 3) % 4)
                a(f"ds_read_b128 v[{r}:{r+3}], v{va if q < 18 else vn} offset:{512*(q % 18)}")
                a(f"s_waitcnt lgkmcnt({4 if RB <= ks < RB + 3 else 3})")
                x = XR + 4 * (p % 4)
                a(mfma(acc, V_W + 8 * ks, x, first=(ks == 0)))
                if ks >= RB + 4:
                    for _ in range(1):
                        if fill: a(fill.pop(0))
                    if ks % 2 == 0 and fill: pass
                a(mfma(acc + 4, V_W + 8 * ks + 4, x, first=(ks == 0)))
                if ks >= RB + 4:
                    for _ in range(1):
                        if fill: a(fill.pop(0))
                self.pad()
            while fill: a(fill.pop(0))
            a(f"""
            s_mov_b32 s{S_TPREV}, s{S_TILE}
            s_mov_b32 s{S_OPREV}, s{S_OCUR}
            s_mov_b32 s{S_TILE}, s{S_T+3}
            s_mul_i32 s{S_OCUR}, s{S_TILE}, {16*ROWB}
            s_add_u32 s{S_OCUR}, s{S_OCUR}, s{S_OB}
            """)
            if jb == 0:
                a(f"s_cmp_lg_u32 s{S_TRIP}, 0\ns_cbranch_scc1 L_np")
                for i in epilogue(self.ACP, V_S, V_C, self.RS, V_TMP, S_OP, cfg): a(i)
                self.stamp(6)
                a("L_np:")
        a(f"""
        s_add_u32 s{S_TRIP}, s{S_TRIP}, 1
        s_lshl_b32 s{S_T}, s3, 6
        s_and_b32 s{S_T}, s{S_T}, 0x100
        s_add_u32 s{S_T}, s{S_T}, s{S_TRIP}
        s_cmp_eq_u32 s{S_T}, {cfg.n8trip}
        s_cbranch_scc1 L_n8job
        s_cmp_lt_u32 s{S_TRIP}, 3
        s_cbranch_scc1 L_trip
        """)
        self.stamp(8)
        a(f"""
        s_lshl_b32 s{S_T}, s{S_TPREV}, 6
        v_add_u32 v16, s{S_T}, v{V_RB}
        ds_read_b32 v{V_R}, v16
        s_waitcnt lgkmcnt(0)
        """)
        for i in epilogue(V_ACB, V_S, V_C, V_R, V_TMP, S_OPREV, cfg): a(i)
        self.stamp(9)
        a("s_branch L_end")
        self.pad()

    def n8_job(self):
        a, cfg = self.a, self.cfg
        ACC8 = V_G
        XF = V_G + 16
        WF = [V_G + 32, V_G + 40]
        PK = [V_G + 48, V_G + 50]
        XA8, WA8 = 16, 17
        a("L_n8job:")
        if cfg.prio8: a(f"s_setprio {cfg.prio8}")
        a(f"""
        s_mul_i32 s{S_T}, s14, {2*MT}
        v_add_u32 v{XA8}, s{S_T}, v{V_LB}
        v_lshlrev_b32 v{WA8}, 3, v0
        v_add_u32 v{WA8}, {W8_OFF}, v{WA8}
        s_waitcnt lgkmcnt(0)
        ds_read_b64 v[{PK[0]}:{PK[0]+1}], v{WA8}
        ds_read_b64 v[{PK[1]}:{PK[1]+1}], v{WA8} offset:512
        ds_read_b128 v[{XF}:{XF+3}], v{XA8}
        ds_read_b128 v[{XF+4}:{XF+7}], v{XA8} offset:{MT}
        """)
        for r in range(16):
            a(f"v_mov_b32 v{ACC8+r}, 0")
        self.pad()
        a("s_waitcnt lgkmcnt(3)")
        for i in dequant2(WF[0], PK[0], PK[0] + 1): a(i)
        a(f"s_mov_b32 s{S_IT}, 0")
        self.pad()
        a("L_n8:")
        for h in range(2):
            cur, nxt = WF[h], WF[1 - h]
            xc, xn = XF + 8 * h, XF + 8 * (1 - h)
            fill = dequant2(nxt, PK[1 - h], PK[1 - h] + 1)
            a(f"ds_read_b64 v[{PK[h]}:{PK[h]+1}], v{WA8} offset:{1024 + 512*h}")
            a(f"ds_read_b128 v[{xn}:{xn+3}], v{XA8} offset:{512*(h+1)}")
            a(f"ds_read_b128 v[{xn+4}:{xn+7}], v{XA8} offset:{MT + 512*(h+1)}")
            a("s_waitcnt lgkmcnt(3)")
            k = 0
            for u in range(2):
                for t in range(2):
                    a(mfma(ACC8 + 8 * u + 4 * t, cur + 4 * t, xc + 4 * u))
                    for i in fill[4*k:4*k+4]: a(i)
                    k += 1
                    self.pad()
        S8, C8 = WF[0], WF[1]
        a(f"""
        v_add_u32 v{XA8}, 1024, v{XA8}
        v_add_u32 v{WA8}, 1024, v{WA8}
        s_add_u32 s{S_IT}, s{S_IT}, 1
        s_cmp_lt_u32 s{S_IT}, 9
        s_cbranch_scc1 L_n8
        v_lshlrev_b32 v17, 4, v3
        v_add_u32 v17, {SC_OFF + 512}, v17
        s_lshl_b32 s{S_T}, s14, 7
        v_add_u32 v16, s{S_T}, v{V_RB}
        s_waitcnt lgkmcnt(0)
        ds_read_b128 v[{XF}:{XF+3}], v17
        ds_read_b128 v[{XF+4}:{XF+7}], v17 offset:1024
        ds_read_b32 v{V_R}, v16
        ds_read_b32 v{V_R+1}, v16 offset:64
        s_waitcnt lgkmcnt(0)
        """)
        self.pad()
        for i in unpack_consts(XF, XF + 4, S8, C8): a(i)
        self.pad()
        for u in range(2):
            for i in epilogue(ACC8 + 8 * u, S8, C8, V_R + u, V_TMP, S_O8 + u, cfg): a(i)
            self.pad()
        self.stamp(7)
        if cfg.prio8: a("s_setprio 0")
        a("s_branch L_pref")

    def finish(self):
        a, cfg = self.a, self.cfg
        a("L_end:")
        if cfg.stamps:
            a(f"""
            s_waitcnt vmcnt(0)
            {"s_memtime" if cfg.stamps == 1 else "s_memrealtime"} s[{S_STAMP+22}:{S_STAMP+23}]
            s_memrealtime s[98:99]
            s_load_dwordx2 s[40:41], s[0:1], 56
            s_waitcnt lgkmcnt(0)
            s_mov_b32 s44, s40
            s_and_b32 s45, s41, 0xffff
            s_mov_b32 s46, 0x100000
            s_mov_b32 s47, 0x00020000
            s_lshl_b32 s48, s2, 3
            s_add_u32 s48, s48, s3
            s_lshl_b32 s48, s48, 6
            v_mov_b32 v2, s48
            v_mov_b32 v4, s96
            s_getreg_b32 s49, hwreg(HW_REG_XCC_ID)
            v_mov_b32 v5, s49
            s_getreg_b32 s49, hwreg(HW_REG_HW_ID)
            v_mov_b32 v6, s49
            v_mov_b32 v7, s98
            v_cmp_eq_u32 vcc, 0, v0
            s_and_saveexec_b64 s[50:51], vcc
            buffer_store_dwordx4 v[4:7], v2, s[44:47], 0 offen
            s_nop 1
            """)
            for qd in range(3):
                for j in range(4):
                    a(f"v_mov_b32 v{4+j}, s{S_STAMP+2*(4*qd+j)}")
                a(f"buffer_store_dwordx4 v[4:7], v2, s[44:47], 0 offen offset:{16+16*qd}")
                a("s_nop 1")
        a("L_done:")

def resolve(lines, cfg):
    il = next(i for i, l in enumerate(lines) if l.strip() == "L_late:")
    iend = next(i for i, l in enumerate(lines) if l.strip() == "L_end:")
    offs = []; off = 0
    for l in lines:
        offs.append(off); off += isize(l)
    hop, dryr = cfg.warm & 1, cfg.warm & 2
    hw = list(range(4)) if dryr else list(range(8))
    dw = list(range(4, 8)) if hop else list(range(8))
    hops = {}
    if hop:
        pads = [i for i in range(il if dryr else iend) if lines[i].strip() == "@@PAD@@"]
        lo, hi = offs[pads[0]] - 200, offs[il if dryr else iend]
        for k in range(len(hw)):
            tgt = lo + (hi - lo) * (k + 0.25) / len(hw)
            hops[min(pads, key=lambda p: abs(offs[p] - tgt))] = k
    cuts = {}
    if dryr:
        pads = [i for i in range(il, iend) if lines[i].strip() == "@@PAD@@"]
        for k in range(1, len(dw)):
            tgt = offs[il] + (offs[iend] - offs[il]) * k / len(dw)
            cuts[min(pads, key=lambda p: abs(offs[p] - tgt))] = k
    out = []; n = 0
    for i, l in enumerate(lines):
        s = l.strip()
        inside = dryr and il < i < iend
        if s == "@@PAD@@":
            if i in hops:
                out.append(f"L_hop{hops[i]}:"); out.append("    s_cbranch_execz L_wret")
            if i in cuts:
                out.append("    s_cbranch_execz L_wret"); out.append(f"L_seg{cuts[i]}:")
        elif s == "L_late:":
            out.append("L_seg0:")
        elif s == "@@WARM@@":
            if cfg.warm:
                out.append("    s_mov_b64 exec, 0")
                if hop:
                    for k, w in enumerate(hw):
                        out.append(f"    s_cmp_eq_u32 s3, {w}"); out.append(f"    s_cbranch_scc1 L_hop{k}")
                if dryr:
                    for k, w in enumerate(dw):
                        out.append(f"    s_cmp_eq_u32 s3, {w}"); out.append(f"    s_cbranch_scc1 L_seg{k}")
                out.append("L_wret:")
                out.append("    s_mov_b64 exec, -1")
        elif s == "L_end:":
            if dryr: out.append("    s_cbranch_execz L_wret")
            out.append(l)
        elif inside and (s == "s_barrier" or s.startswith("buffer_") or "vmcnt" in s
                         or s.startswith(("s_branch", "s_cbranch_scc", "s_setprio", "s_memtime", "s_memrealtime"))):
            out.append(f"    s_cbranch_execz L_sk{n}"); out.append(l); out.append(f"L_sk{n}:"); n += 1
        else:
            out.append(l)
    return out

def build(cfg, fname):
    g = Gen(cfg)
    g.prologue(); g.phase1(); g.jobs(); g.n8_job(); g.finish()
    lines = resolve([l for l in g.a.lines if l.strip()], cfg)
    open(fname, "w").write(wrap("\n".join(lines) + "\n", 256, 512, LDS_BYTES, 256, 256))

if __name__ == "__main__":
    cfg = Cfg()
    for kv in sys.argv[2:]:
        k, v = kv.split("=")
        setattr(cfg, k, int(v) if v.lstrip("-").isdigit() else v.replace("+", " "))
    build(cfg, sys.argv[1])
```

```python
import sys, re
from common import *
from k1 import isize
import k6
from k6 import (MT, RG, R_OFF, W8_OFF, SC_OFF, ZE_OFF, LDS_BYTES, ROWB, QROW, S_X, S_W, S_SC, S_ZE, S_O, S_TRIP, S_TILE,
                S_OPREV, S_OCUR, S_TP, S_IT, S_TPREV, S_O8, S_T, S_MASK, S_OB, S_LW, S_NB, V_DV, V_WA, V_ST, V_C43, V_SH0,
                V_SH1, V_K128, V_LB, V_XA, V_RB, V_ACA, V_ACB, V_S, V_C, V_TMP, V_R, V_G, V_W, mfma, dequant2,
                unpack_consts, epilogue)

class Cfg:
    xcd_m = 4
    stamps = 0
    st_flags = "sc1"
    ahead = 3
    pre = 1
    warm = 3
    rbar = 3
    prio8 = 0
    fine = 0
    sync0 = 1
    rot = 1
    n8trip = 1
    early = 1
    cpf = 0
    small = 0
    defer = 0
    lastplain = 0
    pA = 0
    pB1 = 0
    init = 2
    ndry = 4

S_GX, S_GW = 4, 7
S_PT = 10
S_PO = 52

class Gen(k6.Gen):
    def block_loads(self, b):
        g, r = b // 3, b % 3
        out = []
        for h in range(2):
            ks = 2 * b + h
            F = V_W + 8 * ks
            out.append(([f"s_add_u32 s{S_T+1}, s{S_GW+g}, {(8*r + 4*h)*QROW}",
                         f"buffer_load_dwordx2 v[{F+6}:{F+7}], v{V_WA}, s[{S_W}:{S_W+3}], s{S_T+1} offen"], ("W", ks)))
        for rg in range(2):
            out.append(([f"s_add_u32 m0, s{S_LW}, {rg*RG + b*1024}",
                         f"s_add_u32 s{S_T}, s{S_GX+g}, {rg*8*1152 + r*128}",
                         f"buffer_load_dwordx4 v{V_DV+rg}, s[{S_X}:{S_X+3}], s{S_T} offen lds"], ("D", b)))
        return out

    def prologue(self):
        a, cfg = self.a, self.cfg
        xm = cfg.xcd_m; xn = 32 // xm; mg = 16 // xm
        if cfg.stamps:
            a("s_memrealtime s[96:97]")
        self.stamp(0)
        a(f"""
        s_cmp_ge_u32 s2, 256
        s_cbranch_scc1 L_done
        s_load_dwordx2 s[{S_X}:{S_X+1}], s[0:1], 0
        s_load_dwordx2 s[{S_W}:{S_W+1}], s[0:1], 8
        s_load_dwordx2 s[{S_SC}:{S_SC+1}], s[0:1], 16
        s_load_dwordx2 s[{S_ZE}:{S_ZE+1}], s[0:1], 24
        s_load_dwordx2 s[{S_O}:{S_O+1}], s[0:1], 40
        v_lshrrev_b32 v1, 6, v0
        v_and_b32 v0, 63, v0
        s_and_b32 s14, s2, 7
        v_readfirstlane_b32 s3, v1
        {"@@EARLY@@" if cfg.early else ""}
        s_lshr_b32 s15, s2, 3
        s_and_b32 s16, s14, {mg-1}
        s_lshr_b32 s17, s14, {mg.bit_length()-1}
        s_mul_i32 s16, s16, {xm}
        s_mul_i32 s17, s17, {xn}
        s_and_b32 s18, s15, {xm-1}
        s_lshr_b32 s19, s15, {xm.bit_length()-1}
        s_add_u32 s16, s16, s18
        s_add_u32 s17, s17, s19
        s_mov_b32 s{S_X+2}, {X_BYTES}
        s_mov_b32 s{S_X+3}, 0x00020000
        s_mov_b32 s{S_W+2}, {QW_BYTES}
        s_mov_b32 s{S_W+3}, 0x00020000
        v_and_b32 v2, 15, v0
        v_lshrrev_b32 v3, 4, v0
        v_bfe_u32 v1, v0, 2, 3
        v_mul_u32_u24 v{V_DV}, 1152, v1
        v_lshrrev_b32 v1, 5, v0
        v_lshl_add_u32 v{V_DV}, v1, 6, v{V_DV}
        v_bfe_i32 v1, v0, 4, 1
        v_xor_b32 v1, v1, v0
        v_and_b32 v1, 3, v1
        v_lshl_add_u32 v{V_DV}, v1, 4, v{V_DV}
        v_xor_b32 v{V_DV+1}, 32, v{V_DV}
        v_mul_u32_u24 v{V_WA}, {QROW}, v3
        v_lshl_add_u32 v{V_WA}, v2, 3, v{V_WA}
        s_mul_i32 s18, s16, {128*1152}
        s_mul_i32 s{S_T}, s3, {16*1152}
        s_add_u32 s18, s18, s{S_T}
        s_mul_i32 s19, s17, {288*4}
        s_lshl_b32 s{S_T}, s3, 7
        s_add_u32 s15, s19, s{S_T}
        s_mul_i32 s{S_LW}, s3, {MT}
        s_add_u32 s13, s16, s17
        s_mul_i32 s{S_T}, s13, 43
        s_lshr_b32 s{S_T}, s{S_T}, 7
        s_mul_i32 s{S_T}, s{S_T}, 3
        s_sub_u32 s13, s13, s{S_T}
        {"s_mov_b32 s13, 0" if not cfg.rot else ""}
        """)
        def grp(g):
            if g: a(f"s_add_u32 s{S_T+2}, s{S_T+2}, 1\ns_cmp_eq_u32 s{S_T+2}, 3\ns_cselect_b32 s{S_T+2}, 0, s{S_T+2}")
            else: a(f"s_mov_b32 s{S_T+2}, s13")
            a(f"""
            s_mul_i32 s{S_GX+g}, s{S_T+2}, 384
            s_add_u32 s{S_GX+g}, s{S_GX+g}, s18
            s_mul_i32 s{S_GW+g}, s{S_T+2}, {24*QROW}
            s_add_u32 s{S_GW+g}, s{S_GW+g}, s15
            """)
        grp(0)
        a("s_waitcnt lgkmcnt(0)")
        self.stamp(1)
        if cfg.early and cfg.ndry == 4:
            bl = self.block_loads(0)
            a("s_cmp_ge_u32 s3, 4\ns_cbranch_scc1 L_b0")
            for g in bl[2:]: self.emit_group(g)
            for rg in range(2):
                a(f"s_add_u32 m0, s{S_LW}, {4*MT + rg*RG}")
                a(f"s_add_u32 s{S_T}, s{S_GX}, {(64 + rg*8)*1152}")
                a(f"buffer_load_dwordx4 v{V_DV+rg}, s[{S_X}:{S_X+3}], s{S_T} offen lds")
                self.q.append(("D", 0))
            a("L_b0:")
            for g in bl[:2]: self.emit_group(g)
        else:
            for b in range(cfg.pre):
                bl = self.block_loads(b)
                for g in bl[2:] + bl[:2]: self.emit_group(g)
        a(f"""
        s_mov_b32 s{S_O+2}, {OUT_BYTES}
        s_mov_b32 s{S_O+3}, 0x00020000
        v_mul_u32_u24 v{V_ST}, {ROWB}, v2
        v_lshl_add_u32 v{V_ST}, v3, 4, v{V_ST}
        v_lshrrev_b32 v1, 3, v2
        v_mul_u32_u24 v{V_LB}, {RG}, v1
        v_and_b32 v1, 7, v2
        v_lshl_add_u32 v{V_LB}, v1, 6, v{V_LB}
        v_lshrrev_b32 v1, 2, v2
        v_sub_u32 v1, 0, v1
        v_xor_b32 v1, v1, v3
        v_and_b32 v1, 3, v1
        v_lshl_add_u32 v{V_LB}, v1, 4, v{V_LB}
        v_mov_b32 v{V_XA}, v{V_LB}
        v_mov_b32 v{V_XA+1}, v{V_LB}
        v_lshlrev_b32 v{V_RB}, 2, v2
        v_add_u32 v{V_RB}, {R_OFF}, v{V_RB}
        v_mov_b32 v16, v{V_RB}
        v_mov_b32 v17, v{V_RB}
        """)
        if cfg.cpf:
            a(f"""
            s_getpc_b64 s[{S_T}:{S_T+1}]
            v_lshlrev_b32 v58, 7, v0
            s_lshl_b32 s{S_T+3}, s3, 10
            v_cmp_gt_u32 vcc, {cfg.cpf}, v0
            s_mul_i32 s{S_T+3}, s3, {cfg.cpf*128}
            v_add_u32 v58, s{S_T+3}, v58
            v_mov_b32 v59, s{S_T+1}
            s_mov_b64 exec, vcc
            v_add_co_u32 v58, vcc, s{S_T}, v58
            v_addc_co_u32 v59, vcc, 0, v59, vcc
            global_load_dword v58, v[58:59], off
            s_mov_b64 exec, -1
            """)
            self.q.append(("C", 0))
        if cfg.sync0: a("s_barrier")
        a("@@WARM@@")
        self.stamp(2)
        for b in range(cfg.pre, cfg.init):
            bl = self.block_loads(b)
            for g in bl[2:] + bl[:2]: self.emit_group(g)
        a(f"s_mov_b32 s{S_T+2}, s13")
        grp(1); grp(2)
        a(f"""
        s_mov_b32 s{S_SC+2}, {SZ_BYTES}
        s_mov_b32 s{S_SC+3}, 0x00020000
        s_mov_b32 s{S_ZE+2}, {SZ_BYTES}
        s_mov_b32 s{S_ZE+3}, 0x00020000
        s_mul_i32 s{S_NB}, s17, {288*2}
        s_mov_b32 s{S_MASK}, 0x000f000f
        s_mul_i32 s{S_OB}, s16, {128*ROWB}
        s_add_u32 s{S_OB}, s{S_OB}, s{S_NB}
        s_and_b32 s14, s3, 3
        s_mul_i32 s{S_O8}, s14, {32*ROWB}
        s_add_u32 s{S_O8}, s{S_O8}, s{S_OB}
        s_add_u32 s{S_O8}, s{S_O8}, 512
        s_add_u32 s{S_O8+1}, s{S_O8}, {16*ROWB}
        s_lshl_b32 s{S_T}, s3, 6
        s_add_u32 s{S_OB}, s{S_OB}, s{S_T}
        v_mov_b32 v{V_C43}, 0x43004300
        v_mov_b32 v{V_SH0}, 0x00040000
        v_mov_b32 v{V_SH1}, 0x000c0008
        v_mov_b32 v{V_K128}, 0x43000000
        v_lshrrev_b32 v1, 3, v0
        v_mul_u32_u24 v18, {QROW}, v1
        v_and_b32 v1, 7, v0
        v_lshl_add_u32 v18, v1, 4, v18
        v_lshlrev_b32 v19, 4, v0
        s_mov_b32 s{S_TRIP}, 0
        s_lshr_b32 s55, s3, 2
        """)
        self.PA = [V_XA, V_XA + 1, 16, 17]
        for u in range(4):
            st = S_PT + u if u < 3 else S_TPREV
            so = S_PO + u if u < 3 else S_OPREV
            a(f"s_add_u32 s{st}, s3, {u}\ns_and_b32 s{st}, s{st}, 7")
            for i in self.tile_setup(st, self.PA[u], so): a(i)

    def phase1(self):
        a, cfg = self.a, self.cfg
        AH = cfg.ahead
        ONE, RS = V_G, V_G + 4
        ACP = V_G + 24
        self.ACP, self.RS = ACP, RS
        ACC = [ACP, ACP + 8, ACP + 16, V_ACB]
        ring = [V_S, V_S + 4, V_C, V_C + 4, V_ACA, V_ACA + 4]
        for i in range(4): a(f"v_mov_b32 v{ONE+i}, 0x3f803f80")
        if cfg.pB1:
            a(f"s_cmp_lt_u32 s3, 4\ns_cbranch_scc1 L_pb\ns_setprio {cfg.pB1}\nL_pb:")
        self.wait_vm(("D", 0))
        a("s_barrier")
        self.stamp(3)
        NR, PF = 6, 4
        def rd(f):
            ks, u = f // 4, f % 4
            r = ring[f % NR]
            return f"ds_read_b128 v[{r}:{r+3}], v{self.PA[u]} offset:{ks*512}"
        for f in range(PF): a(rd(f))
        self.wait_vm(("W", 1))
        for i in dequant2(V_W): a(i)
        dq = dequant2(V_W + 8)
        for i in dq[:8]: a(i)
        carry = dq[8:]
        g1 = [f"s_lshl_b32 s{S_T}, s3, 10", f"s_add_u32 m0, s{S_T}, {W8_OFF}",
              f"s_mul_i32 s{S_T}, s13, 3", f"s_add_u32 s{S_T}, s{S_T}, s3", f"s_cmp_ge_u32 s{S_T}, 9",
              f"s_cselect_b32 s{S_T+1}, 9, 0", f"s_sub_u32 s{S_T}, s{S_T}, s{S_T+1}", f"s_mul_i32 s{S_T}, s{S_T}, {8*QROW}",
              f"s_add_u32 s{S_T}, s{S_T}, s19", f"s_add_u32 s{S_T}, s{S_T}, 1024",
              f"buffer_load_dwordx4 v18, s[{S_W}:{S_W+3}], s{S_T} offen lds"]
        self.nissued = 4 * cfg.init
        for ks in range(18):
            j, half = ks >> 1, ks & 1
            if half == 1 and j + 1 < 9:
                self.wait_vm(("D", j + 1))
                a("s_barrier")
                if cfg.fine and j in (0, 2, 5): self.stamp({0: 8, 2: 9, 5: 10}[j])
            nxt = dequant2(V_W + 8 * (ks + 2)) if ks + 2 < 18 else []
            pool = carry + ([("W", ks + 2)] if nxt else []) + nxt[:8]
            carry = nxt[8:]
            loads = []
            want = min(36, 4 * (j + AH) + 2 * (half + 1))
            while self.nissued < want and len(loads) < 4:
                b, r = self.nissued // 4, self.nissued % 4
                loads.append(self.block_loads(b)[(2, 0, 3, 1)[r]]); self.nissued += 1
            if j + AH == 9 and half == 0:
                assert not loads
                loads = [(g1, ("X", 0))]
                a(f"""
                s_cmp_gt_u32 s3, 2
                s_cbranch_scc1 L_x3
                s_cmp_eq_u32 s3, 1
                s_cbranch_scc1 L_x1
                s_cmp_eq_u32 s3, 2
                s_cbranch_scc1 L_x2
                s_mov_b32 m0, {W8_OFF + 8192}
                s_add_u32 s{S_T}, s{S_GW+2}, {16*QROW + 1024}
                buffer_load_dwordx4 v18, s[{S_W}:{S_W+3}], s{S_T} offen lds
                s_branch L_x3
                L_x1:
                s_mov_b32 m0, {SC_OFF}
                s_nop 0
                buffer_load_dwordx4 v19, s[{S_SC}:{S_SC+3}], s{S_NB} offen lds
                s_branch L_x3
                L_x2:
                s_mov_b32 m0, {ZE_OFF}
                s_nop 0
                buffer_load_dwordx4 v19, s[{S_ZE}:{S_ZE+3}], s{S_NB} offen lds
                L_x3:
                """)
            F = V_W + 8 * ks
            fst = ks == 0
            slots = []
            for u in range(4):
                f = 4 * ks + u
                x = ring[f % NR]
                slots.append(([f"s_waitcnt lgkmcnt({min(PF - 1, 71 - f)})", mfma(ACC[u], F, x, fst)], []))
                slots.append(([mfma(ACC[u] + 4, F + 4, x, fst)], [rd(f + PF)] if f + PF < 72 else []))
                if u == 0: slots.append(([mfma(RS, ONE, x, fst)], []))
            nl = len(loads)
            total = sum(1 for x in pool if isinstance(x, str)) + nl + sum(len(s[1]) for s in slots)
            done = 0
            lpos = {2: 0, 6: 1} if nl <= 2 else {0: 0, 2: 1, 4: 2, 6: 3}
            def pop():
                x = pool.pop(0)
                if isinstance(x, tuple):
                    self.wait_vm(x); x = pool.pop(0)
                a(x)
            for i, (pre, forced) in enumerate(slots):
                for x in pre: a(x)
                for x in forced: a(x); done += 1
                if i in lpos and lpos[i] < nl:
                    self.emit_group(loads[lpos[i]]); done += 1
                target = total * (i + 1) / len(slots)
                while pool and done + 0.5 <= target:
                    pop(); done += 1
                self.pad()
            while pool: pop()
        self.stamp(4)

    def jobs(self):
        a, cfg = self.a, self.cfg
        self.late = True
        XR = V_G + 8
        RAW = V_G + 48
        a(f"""
        s_add_u32 s{S_TILE}, s{S_TPREV}, 1
        s_and_b32 s{S_TILE}, s{S_TILE}, 7
        """)
        for i in self.tile_setup(S_TILE, V_XA, S_OCUR): a(i)
        if cfg.pA or cfg.pB1:
            a(f"s_setprio 0\ns_cmp_ge_u32 s3, 4\ns_cbranch_scc1 L_pa\ns_setprio {cfg.pA}\nL_pa:")
        a(f"""
        s_lshl_b32 s{S_T}, s3, 6
        v_add_u32 v16, s{S_T}, v{V_RB}
        ds_write_b32 v16, v{self.RS}
        """)
        if not cfg.small: a("L_late:")
        a("L_pref:")
        for p in range(3):
            a(f"ds_read_b128 v[{XR+4*p}:{XR+4*p+3}], v{V_XA} offset:{512*p}")
        a("L_trip:")
        self.pad()
        RB = cfg.rbar
        for jb in range(2):
            acc, prev = (V_ACA, V_ACB) if jb == 0 else (V_ACB, V_ACA)
            va, vn = V_XA + jb, V_XA + 1 - jb
            fill = epilogue(prev, V_S, V_C, V_R, V_TMP, S_OPREV, cfg)
            for ks in range(18):
                p = 18 * jb + ks
                q = ks + 3
                if jb == 0 and ks == RB:
                    a(f"""
                    s_cmp_lg_u32 s{S_TRIP}, 0
                    s_cbranch_scc1 L_nr
                    s_lshl_b32 s{S_T}, s3, 6
                    s_add_u32 s{S_T}, s{S_T}, {SC_OFF}
                    v_lshlrev_b32 v17, 4, v3
                    v_add_u32 v17, s{S_T}, v17
                    s_waitcnt vmcnt(0) lgkmcnt(0)
                    s_barrier
                    ds_read_b128 v[{RAW}:{RAW+3}], v17
                    ds_read_b128 v[{V_G}:{V_G+3}], v17 offset:1024
                    s_lshl_b32 s{S_T}, s{S_PT+1}, 6
                    v_add_u32 v16, s{S_T}, v{V_RB}
                    ds_read_b32 v{self.RS+1}, v16
                    s_lshl_b32 s{S_T}, s{S_PT+2}, 6
                    v_add_u32 v16, s{S_T}, v{V_RB}
                    ds_read_b32 v{self.RS+2}, v16
                    s_waitcnt lgkmcnt(2)
                    """)
                    for i in unpack_consts(RAW, V_G, V_S, V_C): a(i)
                    self.pad()
                    for i in epilogue(self.ACP, V_S, V_C, self.RS, V_TMP, S_PO, cfg): a(i)
                    a("s_waitcnt lgkmcnt(0)")
                    self.stamp(5)
                    a("L_nr:")
                if ks == RB:
                    a(f"s_lshl_b32 s{S_T}, s{S_TPREV}, 6")
                    a(f"v_add_u32 v16, s{S_T}, v{V_RB}")
                    a(f"ds_read_b32 v{V_R}, v16")
                if ks == 12:
                    a(f"s_add_u32 s{S_T+3}, s{S_TILE}, 1\ns_and_b32 s{S_T+3}, s{S_T+3}, 7\ns_mul_i32 s{S_T+2}, s{S_T+3}, {MT}")
                    a(f"v_add_u32 v{vn}, s{S_T+2}, v{V_LB}")
                r = XR + 4 * ((p + 3) % 4)
                a(f"ds_read_b128 v[{r}:{r+3}], v{va if q < 18 else vn} offset:{512*(q % 18)}")
                a(f"s_waitcnt lgkmcnt({4 if RB <= ks < RB + 3 else 3})")
                x = XR + 4 * (p % 4)
                a(mfma(acc, V_W + 8 * ks, x, first=(ks == 0)))
                if ks >= RB + 4 and fill: a(fill.pop(0))
                a(mfma(acc + 4, V_W + 8 * ks + 4, x, first=(ks == 0)))
                if ks >= RB + 4 and fill: a(fill.pop(0))
                self.pad()
            while fill: a(fill.pop(0))
            a(f"""
            s_mov_b32 s{S_TPREV}, s{S_TILE}
            s_mov_b32 s{S_OPREV}, s{S_OCUR}
            s_mov_b32 s{S_TILE}, s{S_T+3}
            s_mul_i32 s{S_OCUR}, s{S_TILE}, {16*ROWB}
            s_add_u32 s{S_OCUR}, s{S_OCUR}, s{S_OB}
            s_cmp_lg_u32 s{S_TRIP}, {"s55" if cfg.defer else "0"}
            s_cbranch_scc1 L_np{jb}
            """)
            for i in epilogue(self.ACP + 8 * (jb + 1), V_S, V_C, self.RS + jb + 1, V_TMP, S_PO + jb + 1, cfg): a(i)
            if jb == 0: self.stamp(6)
            a(f"L_np{jb}:")
            self.pad()
        a(f"""
        s_add_u32 s{S_TRIP}, s{S_TRIP}, 1
        s_lshl_b32 s{S_T}, s3, 6
        s_and_b32 s{S_T}, s{S_T}, 0x100
        s_add_u32 s{S_T}, s{S_T}, s{S_TRIP}
        s_cmp_eq_u32 s{S_T}, 1
        s_cbranch_scc1 L_n8job
        s_cmp_lt_u32 s{S_TRIP}, 2
        s_cbranch_scc1 L_trip
        """)
        if cfg.small: a("L_late:")
        self.stamp(8)
        a(f"""
        s_lshl_b32 s{S_T}, s{S_TPREV}, 6
        v_add_u32 v16, s{S_T}, v{V_RB}
        ds_read_b32 v{V_R}, v16
        s_waitcnt lgkmcnt(0)
        """)
        for i in epilogue(V_ACB, V_S, V_C, V_R, V_TMP, S_OPREV, cfg):
            a(i.replace(" " + cfg.st_flags, "") if cfg.lastplain else i)
        self.stamp(9)
        a("s_branch L_end")
        self.pad()

def build(cfg, fname):
    g = Gen(cfg)
    g.prologue(); g.phase1(); g.jobs(); g.n8_job(); g.finish()
    lines = [l for l in g.a.lines if l.strip()]
    if cfg.early:
        class C2: warm = 3 if cfg.ndry == 4 else 2
        lines = k6.resolve(lines, C2)
        i0 = next(i for i, l in enumerate(lines) if l.strip() == "s_mov_b64 exec, 0")
        i1 = next(i for i, l in enumerate(lines) if l.strip() == "L_wret:")
        disp = lines[i0 + 1:i1]
        hopd, dryd = (disp[:8], disp[8:]) if cfg.ndry == 4 else ([], disp)
        il = next(i for i, l in enumerate(lines) if l.strip() == "L_seg0:")
        for i in range(il, len(lines)):
            lines[i] = lines[i].replace("L_wret", "L_eret")
        mid = ([lines[i0]] + hopd + lines[i1:i1 + 2]) if cfg.warm & 1 else ["L_wret:"]
        lines[i0:i1 + 2] = mid
        ie = next(i for i, l in enumerate(lines) if l.strip() == "@@EARLY@@")
        init = [f"    v_mov_b32 v{r}, 0" for r in (13, 14, 15, 16, 17)]
        lines[ie:ie + 1] = init + ["    s_mov_b64 exec, 0"] + dryd + ["L_eret:", "    s_mov_b64 exec, -1"]
    else:
        lines = k6.resolve(lines, cfg)
    open(fname, "w").write(wrap("\n".join(lines) + "\n", 256, 512, LDS_BYTES, 256, 256))

if __name__ == "__main__":
    cfg = Cfg()
    for kv in sys.argv[2:]:
        k, v = kv.split("=")
        setattr(cfg, k, int(v) if v.lstrip("-").isdigit() else v.replace("+", " "))
    build(cfg, sys.argv[1])
```

```python
import sys, re
from common import *
import k6, k8
from k8 import *

class Cfg(k8.Cfg):
    warm = 2
    cpf = 9
    small = 1
    early = 0
    pA = 1
    fewbar = 0
    fs = 2

class Gen(k8.Gen):
    def phase1(self):
        a, cfg = self.a, self.cfg
        AH = cfg.ahead
        ONE, RS = V_G, V_G + 4
        ACP = V_G + 24
        self.ACP, self.RS = ACP, RS
        ACC = [ACP, ACP + 8, ACP + 16, V_ACB]
        ring = [V_G + 8, V_G + 12, V_G + 16, V_G + 20, V_ACA, V_ACA + 4]
        EX = [V_G + 48, V_TMP]
        for i in range(4): a(f"v_mov_b32 v{ONE+i}, 0x3f803f80")
        self.wait_vm(("D", 0))
        a("s_barrier")
        self.stamp(3)
        NR, PF = 6, 4
        fl = []
        def rd(f):
            ks, u = f // 4, f % 4
            r = ring[f % NR]
            a(f"ds_read_b128 v[{r}:{r+3}], v{self.PA[u]} offset:{ks*512}"); fl.append(f)
        def lds(instr, tag):
            a(instr); fl.append(tag)
        def need(x):
            if x not in fl: return
            idx = fl.index(x)
            a(f"s_waitcnt lgkmcnt({len(fl) - 1 - idx})")
            del fl[:idx + 1]
        for f in range(PF): rd(f)
        self.wait_vm(("W", 1))
        for i in dequant2(V_W): a(i)
        dq = dequant2(V_W + 8)
        for i in dq[:8]: a(i)
        carry = dq[8:]
        g1 = [f"s_lshl_b32 s{S_T}, s3, 10", f"s_add_u32 m0, s{S_T}, {W8_OFF}",
              f"s_mul_i32 s{S_T}, s13, 3", f"s_add_u32 s{S_T}, s{S_T}, s3", f"s_cmp_ge_u32 s{S_T}, 9",
              f"s_cselect_b32 s{S_T+1}, 9, 0", f"s_sub_u32 s{S_T}, s{S_T}, s{S_T+1}", f"s_mul_i32 s{S_T}, s{S_T}, {8*QROW}",
              f"s_add_u32 s{S_T}, s{S_T}, s19", f"s_add_u32 s{S_T}, s{S_T}, 1024",
              f"buffer_load_dwordx4 v18, s[{S_W}:{S_W+3}], s{S_T} offen lds"]
        self.nissued = 4 * cfg.init
        plan = {j: j + 1 for j in range(8)}
        if cfg.fewbar:
            plan = {0: 1, 1: 2, 2: 3, 3: 5, 5: 7, 7: 8}
        for ks in range(18):
            j, half = ks >> 1, ks & 1
            if half == 1 and j in plan:
                if j == 7: a("s_waitcnt vmcnt(0)")
                else: self.wait_vm(("D", plan[j]))
                a("s_barrier")
            if ks == 17:
                need("rw")
                a("s_barrier")
            nxt = dequant2(V_W + 8 * (ks + 2)) if ks + 2 < 18 else []
            pool = carry + ([("W", ks + 2)] if nxt else []) + nxt[:8]
            carry = nxt[8:]
            loads = []
            want = min(36, 4 * (j + AH) + 2 * (half + 1))
            while self.nissued < want and len(loads) < 4:
                b, r = self.nissued // 4, self.nissued % 4
                loads.append(self.block_loads(b)[(2, 0, 3, 1)[r]]); self.nissued += 1
            if j + AH == 9 and half == 0:
                assert not loads
                loads = [(g1, ("X", 0))]
                a(f"""
                s_cmp_gt_u32 s3, 2
                s_cbranch_scc1 L_x3
                s_cmp_eq_u32 s3, 1
                s_cbranch_scc1 L_x1
                s_cmp_eq_u32 s3, 2
                s_cbranch_scc1 L_x2
                s_mov_b32 m0, {W8_OFF + 8192}
                s_add_u32 s{S_T}, s{S_GW+2}, {16*QROW + 1024}
                buffer_load_dwordx4 v18, s[{S_W}:{S_W+3}], s{S_T} offen lds
                s_branch L_x3
                L_x1:
                s_mov_b32 m0, {SC_OFF}
                s_nop 0
                buffer_load_dwordx4 v19, s[{S_SC}:{S_SC+3}], s{S_NB} offen lds
                s_branch L_x3
                L_x2:
                s_mov_b32 m0, {ZE_OFF}
                s_nop 0
                buffer_load_dwordx4 v19, s[{S_ZE}:{S_ZE+3}], s{S_NB} offen lds
                L_x3:
                """)
            extra = {}
            if ks == 15:
                extra[2] = [lambda: lds(f"ds_read_b128 v[{EX[1]}:{EX[1]+3}], v{self.PA[0]} offset:{17*512}", "e1")]
                extra[4] = [lambda: a(f"s_lshl_b32 s{S_T}, s3, 6\ns_add_u32 s{S_T}, s{S_T}, {SC_OFF}\nv_lshlrev_b32 v19, 4, v3\nv_add_u32 v19, s{S_T}, v19")]
                extra[6] = [lambda: lds(f"ds_read_b128 v[{V_S+4}:{V_S+7}], v19", "cs")]
                extra[8] = [lambda: lds(f"ds_read_b128 v[{V_C+4}:{V_C+7}], v19 offset:1024", "cz")]
            if ks == 16:
                up = []
                for r in range(4):
                    up += [f"v_lshlrev_b32 v{V_S+r}, 16, v{V_S+4+r}", f"v_and_b32 v{V_S+4+r}, 0xffff0000, v{V_S+4+r}",
                           f"v_lshlrev_b32 v{V_C+r}, 16, v{V_C+4+r}", f"v_and_b32 v{V_C+4+r}, 0xffff0000, v{V_C+4+r}"]
                self.up2 = [f"v_add_f32 v{V_C+r}, v{V_K128}, v{V_C+r}" for r in range(8)]
                pool = pool + [("L", "cz")] + up[:10]
                self.up2 = up[10:] + self.up2
                extra[5] = [lambda: a(f"s_lshl_b32 s{S_T}, s3, 6\nv_add_u32 v18, s{S_T}, v{V_RB}")]
                extra[7] = [lambda: lds(f"ds_write_b32 v18, v{RS}", "rw")]
            if ks == 17:
                pool = list(self.up2)
                def rr(dst, st):
                    return lambda: (a(f"s_lshl_b32 s{S_T}, s{st}, 6\nv_add_u32 v18, s{S_T}, v{V_RB}"), lds(f"ds_read_b32 v{dst}, v18", f"r{dst}"))
                extra[0] = [rr(RS + 1, S_PT + 1)]
                extra[2] = [rr(RS + 2, S_PT + 2)]
                extra[4] = [rr(V_R, S_TPREV)]
            F = V_W + 8 * ks
            fst = ks == 0
            slots = []
            for u in range(4):
                f = 4 * ks + u
                x = ring[f % NR]
                slots.append((f, mfma(ACC[u], F, x, fst), f + PF if f + PF < 72 else None))
                slots.append((None, mfma(ACC[u] + 4, F + 4, x, fst), None))
                if u == 0 and ks < 17: slots.append((None, mfma(RS, ONE, x, fst), None))
                if u == 0 and ks == 16:
                    slots.append(("e1", mfma(RS, ONE, EX[1]), None))
            nl = len(loads)
            total = sum(1 for x in pool if isinstance(x, str)) + nl + sum(1 for s in slots if s[2] is not None) + len(extra)
            done = 0
            lpos = {2: 0, 6: 1} if nl <= 2 else {1: 0, 2: 1, 4: 2, 6: 3}
            def pop():
                x = pool.pop(0)
                while isinstance(x, tuple):
                    if x[0] == "L": need(x[1])
                    else: self.wait_vm(x)
                    x = pool.pop(0)
                a(x)
            for i, (nd, mf, nrd) in enumerate(slots):
                if nd is not None: need(nd)
                a(mf)
                if nrd is not None: rd(nrd); done += 1
                for fn in extra.get(i, []): fn(); done += 1
                if i in lpos and lpos[i] < nl:
                    self.emit_group(loads[lpos[i]]); done += 1
                target = total * (i + 1) / len(slots)
                while pool and done + 0.5 <= target:
                    pop(); done += 1
            while pool: pop()
        self.stamp(4)

    def jobs(self):
        a, cfg = self.a, self.cfg
        self.late = True
        XR = V_G + 8
        a(f"s_add_u32 s{S_TILE}, s{S_TPREV}, 1\ns_and_b32 s{S_TILE}, s{S_TILE}, 7")
        for i in self.tile_setup(S_TILE, V_XA, S_OCUR): a(i)
        if cfg.pA:
            a(f"s_cmp_ge_u32 s3, 4\ns_cbranch_scc1 L_pa\ns_setprio {cfg.pA}\nL_pa:")
        for p in range(3):
            a(f"ds_read_b128 v[{XR+4*p}:{XR+4*p+3}], v{V_XA} offset:{512*p}")
        for i in epilogue(self.ACP, V_S, V_C, self.RS, V_TMP, S_PO, cfg): a(i)
        self.stamp(5)
        a("s_branch L_trip")
        a("L_pref:")
        for p in range(3):
            a(f"ds_read_b128 v[{XR+4*p}:{XR+4*p+3}], v{V_XA} offset:{512*p}")
        a("L_trip:")
        for jb in range(2):
            acc, prev = (V_ACA, V_ACB) if jb == 0 else (V_ACB, V_ACA)
            va, vn = V_XA + jb, V_XA + 1 - jb
            rc, rn = V_R + jb, V_R + 1 - jb
            fill = epilogue(prev, V_S, V_C, rc, V_TMP, S_OPREV, cfg)
            RQ = 13
            for ks in range(18):
                p = 18 * jb + ks
                q = ks + 3
                r = XR + 4 * ((p + 3) % 4)
                a(f"s_waitcnt lgkmcnt({3 if RQ < ks <= RQ + 3 else 2})")
                x = XR + 4 * (p % 4)
                a(mfma(acc, V_W + 8 * ks, x, first=(ks == 0)))
                a(f"ds_read_b128 v[{r}:{r+3}], v{va if q < 18 else vn} offset:{512*(q % 18)}")
                if ks >= cfg.fs and fill: a(fill.pop(0))
                if ks == RQ: a(f"v_add_u32 v16, s{S_T}, v{V_RB}")
                if ks == RQ + 1: a(f"v_add_u32 v{vn}, s{S_T+2}, v{V_LB}")
                a(mfma(acc + 4, V_W + 8 * ks + 4, x, first=(ks == 0)))
                if ks >= cfg.fs and fill: a(fill.pop(0))
                if ks == 0: a(f"s_add_u32 s{S_T+3}, s{S_TILE}, 1")
                if ks == 1: a(f"s_and_b32 s{S_T+3}, s{S_T+3}, 7")
                if ks == RQ - 1: a(f"s_lshl_b32 s{S_T}, s{S_TILE}, 6\ns_mul_i32 s{S_T+2}, s{S_T+3}, {MT}")
                if ks == RQ: a(f"ds_read_b32 v{rn}, v16")
            assert not fill
            a(f"""
            s_mov_b32 s{S_TPREV}, s{S_TILE}
            s_mov_b32 s{S_OPREV}, s{S_OCUR}
            s_mov_b32 s{S_TILE}, s{S_T+3}
            s_mul_i32 s{S_OCUR}, s{S_TILE}, {16*ROWB}
            s_add_u32 s{S_OCUR}, s{S_OCUR}, s{S_OB}
            s_cmp_lg_u32 s{S_TRIP}, {"s55" if cfg.defer else "0"}
            s_cbranch_scc1 L_np{jb}
            """)
            for i in epilogue(self.ACP + 8 * (jb + 1), V_S, V_C, self.RS + jb + 1, V_TMP, S_PO + jb + 1, cfg): a(i)
            if jb == 0: self.stamp(6)
            a(f"L_np{jb}:")
        a(f"""
        s_add_u32 s{S_TRIP}, s{S_TRIP}, 1
        s_lshl_b32 s{S_T}, s3, 6
        s_and_b32 s{S_T}, s{S_T}, 0x100
        s_add_u32 s{S_T}, s{S_T}, s{S_TRIP}
        s_cmp_eq_u32 s{S_T}, 1
        s_cbranch_scc1 L_n8job
        s_cmp_lt_u32 s{S_TRIP}, 2
        s_cbranch_scc1 L_trip
        """)
        a("L_late:")
        self.stamp(8)
        for i in epilogue(V_ACB, V_S, V_C, V_R, V_TMP, S_OPREV, cfg): a(i)
        self.stamp(9)
        a("s_branch L_end")
        self.pad()

    def n8_job(self):
        n = len(self.a.lines)
        k6.Gen.n8_job(self)
        L = self.a.lines
        for i in range(n, len(L)):
            L[i] = re.sub(rf"\bv{V_R+1}\b", "v59", L[i])
            L[i] = re.sub(rf"\bv{V_R}\b", "v58", L[i])

def build(cfg, fname):
    g = Gen(cfg)
    g.prologue(); g.phase1(); g.jobs(); g.n8_job(); g.finish()
    lines = k6.resolve([l for l in g.a.lines if l.strip()], cfg)
    open(fname, "w").write(wrap("\n".join(lines) + "\n", 256, 512, LDS_BYTES, 256, 256))

if __name__ == "__main__":
    cfg = Cfg()
    for kv in sys.argv[2:]:
        k, v = kv.split("=")
        setattr(cfg, k, int(v) if v.lstrip("-").isdigit() else v.replace("+", " "))
    build(cfg, sys.argv[1])
```

```python
import sys, re
from common import *
from k1 import isize

class Cfg:
    xcd_m = 4
    stamps = 0
    st_flags = "sc1"
    ahead = 3
    pre = 1
    n8trip = 1
    warm = 3
    rbar = 3
    prio8 = 0
    touch = 0
    fine = 0
    sync0 = 1

MT, RG = 18432, 9216
R_OFF = 8 * MT
W8_OFF = R_OFF + 512
SC_OFF = W8_OFF + 9216
ZE_OFF = SC_OFF + 1024
LDS_BYTES = ZE_OFF + 1024
ROWB, QROW = N * 2, N * 4

S_X, S_W, S_SC, S_ZE, S_O = 20, 24, 28, 32, 36
S_XB, S_WB, S_TRIP, S_TILE, S_OPREV, S_OCUR, S_OP, S_TP, S_IT, S_TPREV = 40, 41, 42, 43, 44, 45, 46, 47, 48, 49
S_O8 = 50
S_T = 58
S_MASK, S_OB, S_LW, S_NB = 64, 65, 66, 67
S_STAMP = 72

V_DV, V_WA, V_ST, V_C43, V_SH0, V_SH1, V_K128, V_LB = 4, 6, 7, 8, 9, 10, 11, 12
V_XA = 13
V_RB = 15
V_ACA, V_ACB = 20, 28
V_S, V_C = 36, 44
V_TMP = 52
V_R = 56
V_G = 60
V_W = 112

def mfma(d, a_, b, first=False):
    c = "0" if first else f"v[{d}:{d+3}]"
    return f"v_mfma_f32_16x16x32_bf16 v[{d}:{d+3}], v[{a_}:{a_+3}], v[{b}:{b+3}], {c}"

def dequant2(F, w0=None, w1=None):
    if w0 is None: w0, w1 = F + 6, F + 7
    out = []
    for base, w in ((F, w0), (F + 4, w1)):
        out += [
            f"v_pk_lshrrev_b16 v{base}, v{V_SH0}, v{w} op_sel:[0,0] op_sel_hi:[1,0]",
            f"v_pk_lshrrev_b16 v{base+1}, v{V_SH1}, v{w} op_sel:[0,0] op_sel_hi:[1,0]",
            f"v_pk_lshrrev_b16 v{base+2}, v{V_SH0}, v{w} op_sel:[0,1] op_sel_hi:[1,1]",
            f"v_pk_lshrrev_b16 v{base+3}, v{V_SH1}, v{w} op_sel:[0,1] op_sel_hi:[1,1]",
        ]
        out += [f"v_and_or_b32 v{base+i}, v{base+i}, s{S_MASK}, v{V_C43}" for i in range(4)]
    return out

def unpack_consts(raw_s, raw_z, S, C):
    out = []
    for r in range(4):
        out.append(f"v_lshlrev_b32 v{S+r}, 16, v{raw_s+r}")
        out.append(f"v_and_b32 v{S+4+r}, 0xffff0000, v{raw_s+r}")
        out.append(f"v_lshlrev_b32 v{C+r}, 16, v{raw_z+r}")
        out.append(f"v_and_b32 v{C+4+r}, 0xffff0000, v{raw_z+r}")
        out.append(f"v_add_f32 v{C+r}, v{V_K128}, v{C+r}")
        out.append(f"v_add_f32 v{C+4+r}, v{V_K128}, v{C+4+r}")
    return out

def epilogue(acc, S, C, R, tmp, s_off, cfg):
    out = []
    for r in range(8):
        out.append(f"v_fma_f32 v{acc+r}, -v{C+r}, v{R}, v{acc+r}")
    for r in range(8):
        out.append(f"v_mul_f32 v{acc+r}, v{S+r}, v{acc+r}")
    for r in range(4):
        out.append(f"v_cvt_pk_bf16_f32 v{tmp+r}, v{acc+r}, v{acc+4+r}")
    out.append(f"buffer_store_dwordx4 v[{tmp}:{tmp+3}], v{V_ST}, s[{S_O}:{S_O+3}], s{s_off} offen {cfg.st_flags}")
    return out

class Gen:
    def __init__(self, cfg):
        self.cfg = cfg
        self.a = Asm()
        self.q = []

    def stamp(self, i):
        if self.cfg.fine and getattr(self, "late", False) and i in (5, 6, 7, 8, 9, 10): return
        if self.cfg.stamps:
            op = "s_memtime" if self.cfg.stamps == 1 else "s_memrealtime"
            self.a(f"{op} s[{S_STAMP+2*i}:{S_STAMP+2*i+1}]")

    def pad(self):
        self.a("@@PAD@@")

    def wait_vm(self, tag):
        idx = max(i for i, t in enumerate(self.q) if t == tag)
        self.a(f"s_waitcnt vmcnt({len(self.q) - 1 - idx})")

    def block_loads(self, b):
        out = []
        for h in range(2):
            ks = 2 * b + h
            F = V_W + 8 * ks
            out.append(([f"s_add_u32 s{S_T+1}, s{S_WB}, {4*ks*QROW}",
                         f"buffer_load_dwordx2 v[{F+6}:{F+7}], v{V_WA}, s[{S_W}:{S_W+3}], s{S_T+1} offen"], ("W", ks)))
        for rg in range(2):
            out.append(([f"s_add_u32 m0, s{S_LW}, {rg*RG + b*1024}",
                         f"s_add_u32 s{S_T}, s{S_XB}, {rg*8*1152 + b*128}",
                         f"buffer_load_dwordx4 v{V_DV+rg}, s[{S_X}:{S_X+3}], s{S_T} offen lds"], ("D", b)))
        return out

    def emit_group(self, grp):
        for i in grp[0]: self.a(i)
        self.q.append(grp[1])

    def tile_setup(self, s_tile, v_addr, s_out):
        return [f"s_mul_i32 s{S_T+2}, s{s_tile}, {MT}",
                f"v_add_u32 v{v_addr}, s{S_T+2}, v{V_LB}",
                f"s_mul_i32 s{s_out}, s{s_tile}, {16*ROWB}",
                f"s_add_u32 s{s_out}, s{s_out}, s{S_OB}"]

    def prologue(self):
        a, cfg = self.a, self.cfg
        xm = cfg.xcd_m; xn = 32 // xm; mg = 16 // xm
        if cfg.stamps:
            a("s_memrealtime s[96:97]")
        self.stamp(0)
        a(f"""
        s_cmp_ge_u32 s2, 256
        s_cbranch_scc1 L_done
        s_load_dwordx2 s[{S_X}:{S_X+1}], s[0:1], 0
        s_load_dwordx2 s[{S_W}:{S_W+1}], s[0:1], 8
        s_load_dwordx2 s[{S_SC}:{S_SC+1}], s[0:1], 16
        s_load_dwordx2 s[{S_ZE}:{S_ZE+1}], s[0:1], 24
        s_load_dwordx2 s[{S_O}:{S_O+1}], s[0:1], 40
        v_lshrrev_b32 v1, 6, v0
        v_and_b32 v0, 63, v0
        s_and_b32 s14, s2, 7
        v_readfirstlane_b32 s3, v1
        s_lshr_b32 s15, s2, 3
        s_and_b32 s16, s14, {mg-1}
        s_lshr_b32 s17, s14, {mg.bit_length()-1}
        s_mul_i32 s16, s16, {xm}
        s_mul_i32 s17, s17, {xn}
        s_and_b32 s18, s15, {xm-1}
        s_lshr_b32 s19, s15, {xm.bit_length()-1}
        s_add_u32 s16, s16, s18
        s_add_u32 s17, s17, s19
        s_mov_b32 s{S_X+2}, {X_BYTES}
        s_mov_b32 s{S_X+3}, 0x00020000
        s_mov_b32 s{S_W+2}, {QW_BYTES}
        s_mov_b32 s{S_W+3}, 0x00020000
        v_and_b32 v2, 15, v0
        v_lshrrev_b32 v3, 4, v0
        v_bfe_u32 v1, v0, 2, 3
        v_mul_u32_u24 v{V_DV}, 1152, v1
        v_lshrrev_b32 v1, 5, v0
        v_lshl_add_u32 v{V_DV}, v1, 6, v{V_DV}
        v_bfe_i32 v1, v0, 4, 1
        v_xor_b32 v1, v1, v0
        v_and_b32 v1, 3, v1
        v_lshl_add_u32 v{V_DV}, v1, 4, v{V_DV}
        v_xor_b32 v{V_DV+1}, 32, v{V_DV}
        v_mul_u32_u24 v{V_WA}, {QROW}, v3
        v_lshl_add_u32 v{V_WA}, v2, 3, v{V_WA}
        s_mul_i32 s{S_XB}, s16, {128*1152}
        s_mul_i32 s{S_T}, s3, {16*1152}
        s_add_u32 s{S_XB}, s{S_XB}, s{S_T}
        s_mul_i32 s19, s17, {288*4}
        s_lshl_b32 s{S_T}, s3, 7
        s_add_u32 s{S_WB}, s19, s{S_T}
        s_mul_i32 s{S_LW}, s3, {MT}
        s_mov_b32 s{S_SC+2}, {SZ_BYTES}
        s_mov_b32 s{S_SC+3}, 0x00020000
        s_mov_b32 s{S_ZE+2}, {SZ_BYTES}
        s_mov_b32 s{S_ZE+3}, 0x00020000
        s_mov_b32 s{S_O+2}, {OUT_BYTES}
        s_mov_b32 s{S_O+3}, 0x00020000
        s_mul_i32 s{S_NB}, s17, {288*2}
        s_mov_b32 s{S_MASK}, 0x000f000f
        s_mul_i32 s{S_OB}, s16, {128*ROWB}
        s_add_u32 s{S_OB}, s{S_OB}, s{S_NB}
        s_and_b32 s14, s3, 3
        v_mul_u32_u24 v{V_ST}, {ROWB}, v2
        v_lshl_add_u32 v{V_ST}, v3, 4, v{V_ST}
        v_lshrrev_b32 v1, 3, v2
        v_mul_u32_u24 v{V_LB}, {RG}, v1
        v_and_b32 v1, 7, v2
        v_lshl_add_u32 v{V_LB}, v1, 6, v{V_LB}
        v_lshrrev_b32 v1, 2, v2
        v_sub_u32 v1, 0, v1
        v_xor_b32 v1, v1, v3
        v_and_b32 v1, 3, v1
        v_lshl_add_u32 v{V_LB}, v1, 4, v{V_LB}
        v_mov_b32 v{V_XA}, v{V_LB}
        v_mov_b32 v{V_XA+1}, v{V_LB}
        v_lshlrev_b32 v{V_RB}, 2, v2
        v_add_u32 v{V_RB}, {R_OFF}, v{V_RB}
        v_mov_b32 v16, v{V_RB}
        v_mov_b32 v17, v{V_RB}
        s_waitcnt lgkmcnt(0)
        """)
        self.stamp(1)
        for b in range(cfg.pre):
            bl = self.block_loads(b)
            for g in bl[2:] + bl[:2]: self.emit_group(g)
        if cfg.sync0: a("s_barrier")
        if cfg.touch == 3:
            a(f"""
            s_lshl_b32 s{S_T}, s3, 3
            v_add_u32 v16, s{S_T}, v0
            v_add_u32 v16, 8, v16
            v_mul_u32_u24 v16, {QROW}, v16
            v_cmp_gt_u32 vcc, 8, v0
            s_mov_b64 exec, vcc
            buffer_load_dword v58, v16, s[{S_W}:{S_W+3}], s19 offen
            s_mov_b64 exec, -1
            v_mov_b32 v16, v{V_RB}
            """)
            self.q += [("T", 0)]
        elif cfg.touch:
            xr = max(1, 128 // xn // 4); wr = -(-72 // xm // 4)
            assert xr <= 7 and wr <= 14
            a(f"""
            v_mul_u32_u24 v16, 0x1c72, v0
            v_lshrrev_b32 v16, 16, v16
            v_mul_u32_u24 v17, 9, v16
            v_sub_u32 v17, v0, v17
            v_lshlrev_b32 v17, 7, v17
            s_cmp_ge_u32 s3, 4
            s_cbranch_scc1 L_tw
            v_mul_u32_u24 v16, 1152, v16
            v_add_u32 v16, v16, v17
            v_cmp_gt_u32 vcc, {9*xr if cfg.touch == 1 else 1}, v0
            s_and_b32 s{S_T}, s17, {xn-1}
            s_lshl_b32 s{S_T}, s{S_T}, 2
            s_add_u32 s{S_T}, s{S_T}, s14
            s_mul_i32 s{S_T}, s{S_T}, {xr*1152}
            s_mul_i32 s{S_T+1}, s16, {128*1152}
            s_add_u32 s{S_T}, s{S_T}, s{S_T+1}
            s_mov_b64 exec, vcc
            buffer_load_dword v58, v16, s[{S_X}:{S_X+3}], s{S_T} offen
            {"buffer_load_dword v59, v16, s[%d:%d], s%d offen" % (S_X, S_X+3, S_T) if wr > 7 else ""}
            s_branch L_tx
            L_tw:
            v_mul_u32_u24 v16, {QROW}, v16
            v_add_u32 v16, v16, v17
            v_cmp_gt_u32 vcc, {9*min(wr,7)}, v0
            s_and_b32 s{S_T}, s16, {xm-1}
            s_lshl_b32 s{S_T}, s{S_T}, 2
            s_add_u32 s{S_T}, s{S_T}, s14
            s_mul_i32 s{S_T}, s{S_T}, {wr*QROW}
            s_add_u32 s{S_T}, s{S_T}, s19
            s_mov_b64 exec, vcc
            buffer_load_dword v58, v16, s[{S_W}:{S_W+3}], s{S_T} offen
            {"s_add_u32 s%d, s%d, %d" % (S_T, S_T, (wr-7)*QROW) if wr > 7 else ""}
            {"buffer_load_dword v59, v16, s[%d:%d], s%d offen" % (S_W, S_W+3, S_T) if wr > 7 else ""}
            L_tx:
            s_mov_b64 exec, -1
            v_mov_b32 v16, v{V_RB}
            v_mov_b32 v17, v{V_RB}
            """)
            self.q += [("T", 0)] * (2 if wr > 7 else 1)
        a("@@WARM@@")
        self.stamp(2)
        for b in range(cfg.pre, cfg.ahead):
            for g in self.block_loads(b): self.emit_group(g)
        a(f"""
        s_mul_i32 s{S_O8}, s14, {32*ROWB}
        s_add_u32 s{S_O8}, s{S_O8}, s{S_OB}
        s_add_u32 s{S_O8}, s{S_O8}, 512
        s_add_u32 s{S_O8+1}, s{S_O8}, {16*ROWB}
        s_lshl_b32 s{S_T}, s3, 6
        s_add_u32 s{S_OB}, s{S_OB}, s{S_T}
        v_mov_b32 v{V_C43}, 0x43004300
        v_mov_b32 v{V_SH0}, 0x00040000
        v_mov_b32 v{V_SH1}, 0x000c0008
        v_mov_b32 v{V_K128}, 0x43000000
        v_lshrrev_b32 v1, 3, v0
        v_mul_u32_u24 v18, {QROW}, v1
        v_and_b32 v1, 7, v0
        v_lshl_add_u32 v18, v1, 4, v18
        v_lshlrev_b32 v19, 4, v0
        s_lshl_b32 s{S_TP}, s14, 1
        s_lshr_b32 s{S_T}, s3, 2
        s_add_u32 s{S_TP}, s{S_TP}, s{S_T}
        s_add_u32 s{S_TPREV}, s{S_TP}, 1
        s_and_b32 s{S_TPREV}, s{S_TPREV}, 7
        s_mov_b32 s{S_TRIP}, 0
        """)
        for i in self.tile_setup(S_TP, V_XA, S_OP): a(i)
        for i in self.tile_setup(S_TPREV, V_XA + 1, S_OPREV): a(i)

    def phase1(self):
        a, cfg = self.a, self.cfg
        AH = cfg.ahead
        ONE, RS, ACP, XF = V_G, V_G + 4, V_G + 8, V_G + 16
        self.ACP, self.RS = ACP, RS
        ACC = [ACP, V_ACB]
        for i in range(4): a(f"v_mov_b32 v{ONE+i}, 0x3f803f80")
        if cfg.stamps and cfg.fine:
            self.stamp(5)
            self.wait_vm(("D", 0))
            self.stamp(7)
        self.wait_vm(("D", 0))
        a("s_barrier")
        self.stamp(3)
        self.needw = True
        NR, PF = 6, 2
        def rd(f):
            ks, u = f // 2, f % 2
            r = XF + 4 * (f % NR)
            return f"ds_read_b128 v[{r}:{r+3}], v{V_XA+u} offset:{ks*512}"
        for f in range(PF): a(rd(f))
        self.wait_vm(("W", 1))
        for i in dequant2(V_W): a(i)
        dq = dequant2(V_W + 8)
        for i in dq[:8]: a(i)
        carry = dq[8:]
        g1 = [f"s_lshl_b32 s{S_T}, s3, 10", f"s_add_u32 m0, s{S_T}, {W8_OFF}", f"s_mul_i32 s{S_T}, s3, {8*QROW}",
              f"s_add_u32 s{S_T}, s{S_T}, s19", f"s_add_u32 s{S_T}, s{S_T}, 1024",
              f"buffer_load_dwordx4 v18, s[{S_W}:{S_W+3}], s{S_T} offen lds"]
        for ks in range(18):
            j, half = ks >> 1, ks & 1
            if half == 1 and j + 1 < 9:
                self.wait_vm(("D", j + 1))
                a("s_barrier")
                if cfg.fine and j in (0, 2, 5): self.stamp({0: 8, 2: 9, 5: 10}[j])
            nxt = dequant2(V_W + 8 * (ks + 2)) if ks + 2 < 18 else []
            pool = carry + ([("W", ks + 2)] if nxt else []) + nxt[:8]
            carry = nxt[8:]
            loads = []
            if j + AH < 9:
                bl = self.block_loads(j + AH)
                loads = [bl[half], bl[2 + half]]
            elif j + AH == 9 and half == 0:
                loads = [(g1, ("X", 0))]
                a(f"""
                s_cmp_gt_u32 s3, 2
                s_cbranch_scc1 L_x3
                s_cmp_eq_u32 s3, 1
                s_cbranch_scc1 L_x1
                s_cmp_eq_u32 s3, 2
                s_cbranch_scc1 L_x2
                s_mov_b32 m0, {W8_OFF + 8192}
                s_add_u32 s{S_T}, s19, {64*QROW + 1024}
                buffer_load_dwordx4 v18, s[{S_W}:{S_W+3}], s{S_T} offen lds
                s_branch L_x3
                L_x1:
                s_mov_b32 m0, {SC_OFF}
                s_nop 0
                buffer_load_dwordx4 v19, s[{S_SC}:{S_SC+3}], s{S_NB} offen lds
                s_branch L_x3
                L_x2:
                s_mov_b32 m0, {ZE_OFF}
                s_nop 0
                buffer_load_dwordx4 v19, s[{S_ZE}:{S_ZE+3}], s{S_NB} offen lds
                L_x3:
                """)
            F = V_W + 8 * ks
            x0, x1 = XF + 4 * ((2 * ks) % NR), XF + 4 * ((2 * ks + 1) % NR)
            fst = ks == 0
            reads = [rd(2 * ks + 2), rd(2 * ks + 3)] if ks < 17 else []
            slots = [([f"s_waitcnt lgkmcnt(0)", mfma(ACC[0], F, x0, fst)], reads[:1]),
                     ([mfma(ACC[0] + 4, F + 4, x0, fst)], reads[1:]),
                     ([mfma(RS, ONE, x0, fst)], []),
                     ([mfma(ACC[1], F, x1, fst)], []),
                     ([mfma(ACC[1] + 4, F + 4, x1, fst)], [])]
            nl = len(loads)
            total = sum(1 for x in pool if isinstance(x, str)) + nl + len(reads)
            done = 0
            lpos = {2: 0, 4: 1}
            def pop():
                x = pool.pop(0)
                if isinstance(x, tuple):
                    self.wait_vm(x); x = pool.pop(0)
                a(x)
            for i, (pre, forced) in enumerate(slots):
                for x in pre: a(x)
                for x in forced: a(x); done += 1
                target = total * (i + 1) / len(slots) - (1 if i in lpos and lpos[i] < nl else 0)
                while pool and done + 0.5 <= target:
                    pop(); done += 1
                if i in lpos and lpos[i] < nl:
                    self.emit_group(loads[lpos[i]]); done += 1
                self.pad()
            while pool: pop()
        self.stamp(4)

    def jobs(self):
        a, cfg = self.a, self.cfg
        self.late = True
        XR = V_G + 16
        RAW = V_G + 32
        a(f"""
        s_add_u32 s{S_TILE}, s{S_TPREV}, 1
        s_and_b32 s{S_TILE}, s{S_TILE}, 7
        """)
        for i in self.tile_setup(S_TILE, V_XA, S_OCUR): a(i)
        a(f"""
        s_lshl_b32 s{S_T}, s{S_TP}, 6
        v_add_u32 v16, s{S_T}, v{V_RB}
        s_nop 2
        ds_write_b32 v16, v{self.RS}
        """)
        a("L_late:")
        a("L_pref:")
        for p in range(3):
            a(f"ds_read_b128 v[{XR+4*p}:{XR+4*p+3}], v{V_XA} offset:{512*p}")
        a("L_trip:")
        self.pad()
        for jb in range(2):
            acc, prev = (V_ACA, V_ACB) if jb == 0 else (V_ACB, V_ACA)
            va, vn = V_XA + jb, V_XA + 1 - jb
            RB = cfg.rbar
            fill = epilogue(prev, V_S, V_C, V_R, V_TMP, S_OPREV, cfg)
            for ks in range(18):
                p = 18 * jb + ks
                q = ks + 3
                skipwait = False
                if jb == 0 and ks == RB:
                    a(f"""
                    s_cmp_lg_u32 s{S_TRIP}, 0
                    s_cbranch_scc1 L_nr
                    s_lshl_b32 s{S_T}, s3, 6
                    s_add_u32 s{S_T}, s{S_T}, {SC_OFF}
                    v_lshlrev_b32 v17, 4, v3
                    v_add_u32 v17, s{S_T}, v17
                    s_waitcnt vmcnt(0) lgkmcnt(0)
                    s_barrier
                    ds_read_b128 v[{RAW}:{RAW+3}], v17
                    ds_read_b128 v[{RAW+4}:{RAW+7}], v17 offset:1024
                    s_waitcnt lgkmcnt(0)
                    """)
                    for i in unpack_consts(RAW, RAW + 4, V_S, V_C): a(i)
                    self.stamp(5)
                    a("L_nr:")
                if ks == RB:
                    a(f"s_lshl_b32 s{S_T}, s{S_TPREV}, 6")
                    a(f"v_add_u32 v16, s{S_T}, v{V_RB}")
                    a(f"ds_read_b32 v{V_R}, v16")
                if ks == 12:
                    a(f"s_add_u32 s{S_T+3}, s{S_TILE}, 1\ns_and_b32 s{S_T+3}, s{S_T+3}, 7\ns_mul_i32 s{S_T+2}, s{S_T+3}, {MT}")
                    a(f"v_add_u32 v{vn}, s{S_T+2}, v{V_LB}")
                r = XR + 4 * ((p + 3) % 4)
                a(f"ds_read_b128 v[{r}:{r+3}], v{va if q < 18 else vn} offset:{512*(q % 18)}")
                a(f"s_waitcnt lgkmcnt({4 if RB <= ks < RB + 3 else 3})")
                x = XR + 4 * (p % 4)
                a(mfma(acc, V_W + 8 * ks, x, first=(ks == 0)))
                if ks >= RB + 4:
                    for _ in range(1):
                        if fill: a(fill.pop(0))
                    if ks % 2 == 0 and fill: pass
                a(mfma(acc + 4, V_W + 8 * ks + 4, x, first=(ks == 0)))
                if ks >= RB + 4:
                    for _ in range(1):
                        if fill: a(fill.pop(0))
                self.pad()
            while fill: a(fill.pop(0))
            a(f"""
            s_mov_b32 s{S_TPREV}, s{S_TILE}
            s_mov_b32 s{S_OPREV}, s{S_OCUR}
            s_mov_b32 s{S_TILE}, s{S_T+3}
            s_mul_i32 s{S_OCUR}, s{S_TILE}, {16*ROWB}
            s_add_u32 s{S_OCUR}, s{S_OCUR}, s{S_OB}
            """)
            if jb == 0:
                a(f"s_cmp_lg_u32 s{S_TRIP}, 0\ns_cbranch_scc1 L_np")
                for i in epilogue(self.ACP, V_S, V_C, self.RS, V_TMP, S_OP, cfg): a(i)
                self.stamp(6)
                a("L_np:")
        a(f"""
        s_add_u32 s{S_TRIP}, s{S_TRIP}, 1
        s_lshl_b32 s{S_T}, s3, 6
        s_and_b32 s{S_T}, s{S_T}, 0x100
        s_add_u32 s{S_T}, s{S_T}, s{S_TRIP}
        s_cmp_eq_u32 s{S_T}, {cfg.n8trip}
        s_cbranch_scc1 L_n8job
        s_cmp_lt_u32 s{S_TRIP}, 3
        s_cbranch_scc1 L_trip
        """)
        self.stamp(8)
        a(f"""
        s_lshl_b32 s{S_T}, s{S_TPREV}, 6
        v_add_u32 v16, s{S_T}, v{V_RB}
        ds_read_b32 v{V_R}, v16
        s_waitcnt lgkmcnt(0)
        """)
        for i in epilogue(V_ACB, V_S, V_C, V_R, V_TMP, S_OPREV, cfg): a(i)
        self.stamp(9)
        a("s_branch L_end")
        self.pad()

    def n8_job(self):
        a, cfg = self.a, self.cfg
        ACC8 = V_G
        XF = V_G + 16
        WF = [V_G + 32, V_G + 40]
        PK = [V_G + 48, V_G + 50]
        XA8, WA8 = 16, 17
        a("L_n8job:")
        if cfg.prio8: a(f"s_setprio {cfg.prio8}")
        a(f"""
        s_mul_i32 s{S_T}, s14, {2*MT}
        v_add_u32 v{XA8}, s{S_T}, v{V_LB}
        v_lshlrev_b32 v{WA8}, 3, v0
        v_add_u32 v{WA8}, {W8_OFF}, v{WA8}
        s_waitcnt lgkmcnt(0)
        ds_read_b64 v[{PK[0]}:{PK[0]+1}], v{WA8}
        ds_read_b64 v[{PK[1]}:{PK[1]+1}], v{WA8} offset:512
        ds_read_b128 v[{XF}:{XF+3}], v{XA8}
        ds_read_b128 v[{XF+4}:{XF+7}], v{XA8} offset:{MT}
        """)
        for r in range(16):
            a(f"v_mov_b32 v{ACC8+r}, 0")
        self.pad()
        a("s_waitcnt lgkmcnt(3)")
        for i in dequant2(WF[0], PK[0], PK[0] + 1): a(i)
        a(f"s_mov_b32 s{S_IT}, 0")
        self.pad()
        a("L_n8:")
        for h in range(2):
            cur, nxt = WF[h], WF[1 - h]
            xc, xn = XF + 8 * h, XF + 8 * (1 - h)
            fill = dequant2(nxt, PK[1 - h], PK[1 - h] + 1)
            rds = [f"ds_read_b128 v[{xn}:{xn+3}], v{XA8} offset:{512*(h+1)}",
                   f"ds_read_b64 v[{PK[h]}:{PK[h]+1}], v{WA8} offset:{1024 + 512*h}",
                   f"ds_read_b128 v[{xn+4}:{xn+7}], v{XA8} offset:{MT + 512*(h+1)}"]
            a("s_waitcnt lgkmcnt(1)")
            k = 0
            for u in range(2):
                for t in range(2):
                    if k == 2: a("s_waitcnt lgkmcnt(2)")
                    a(mfma(ACC8 + 8 * u + 4 * t, cur + 4 * t, xc + 4 * u))
                    if k < 3: a(rds[k])
                    for i in fill[4*k:4*k+4]: a(i)
                    k += 1
                    self.pad()
            if h == 0: a("s_nop 0")
        S8, C8 = WF[0], WF[1]
        a(f"""
        v_add_u32 v{XA8}, 1024, v{XA8}
        v_add_u32 v{WA8}, 1024, v{WA8}
        s_add_u32 s{S_IT}, s{S_IT}, 1
        s_cmp_lt_u32 s{S_IT}, 9
        s_cbranch_scc1 L_n8
        v_lshlrev_b32 v17, 4, v3
        v_add_u32 v17, {SC_OFF + 512}, v17
        s_lshl_b32 s{S_T}, s14, 7
        v_add_u32 v16, s{S_T}, v{V_RB}
        s_waitcnt lgkmcnt(0)
        ds_read_b128 v[{XF}:{XF+3}], v17
        ds_read_b128 v[{XF+4}:{XF+7}], v17 offset:1024
        ds_read_b32 v{V_R}, v16
        ds_read_b32 v{V_R+1}, v16 offset:64
        s_waitcnt lgkmcnt(0)
        """)
        self.pad()
        for i in unpack_consts(XF, XF + 4, S8, C8): a(i)
        self.pad()
        for u in range(2):
            for i in epilogue(ACC8 + 8 * u, S8, C8, V_R + u, V_TMP, S_O8 + u, cfg): a(i)
            self.pad()
        self.stamp(7)
        if cfg.prio8: a("s_setprio 0")
        a("s_branch L_pref")

    def finish(self):
        a, cfg = self.a, self.cfg
        a("L_end:")
        if cfg.stamps:
            a(f"""
            s_waitcnt vmcnt(0)
            {"s_memtime" if cfg.stamps == 1 else "s_memrealtime"} s[{S_STAMP+22}:{S_STAMP+23}]
            s_memrealtime s[98:99]
            s_load_dwordx2 s[40:41], s[0:1], 56
            s_waitcnt lgkmcnt(0)
            s_mov_b32 s44, s40
            s_and_b32 s45, s41, 0xffff
            s_mov_b32 s46, 0x100000
            s_mov_b32 s47, 0x00020000
            s_lshl_b32 s48, s2, 3
            s_add_u32 s48, s48, s3
            s_lshl_b32 s48, s48, 6
            v_mov_b32 v2, s48
            v_mov_b32 v4, s96
            s_getreg_b32 s49, hwreg(HW_REG_XCC_ID)
            v_mov_b32 v5, s49
            s_getreg_b32 s49, hwreg(HW_REG_HW_ID)
            v_mov_b32 v6, s49
            v_mov_b32 v7, s98
            v_cmp_eq_u32 vcc, 0, v0
            s_and_saveexec_b64 s[50:51], vcc
            buffer_store_dwordx4 v[4:7], v2, s[44:47], 0 offen
            s_nop 1
            """)
            for qd in range(3):
                for j in range(4):
                    a(f"v_mov_b32 v{4+j}, s{S_STAMP+2*(4*qd+j)}")
                a(f"buffer_store_dwordx4 v[4:7], v2, s[44:47], 0 offen offset:{16+16*qd}")
                a("s_nop 1")
        a("L_done:")

def resolve(lines, cfg):
    il = next(i for i, l in enumerate(lines) if l.strip() == "L_late:")
    iend = next(i for i, l in enumerate(lines) if l.strip() == "L_end:")
    offs = []; off = 0
    for l in lines:
        offs.append(off); off += isize(l)
    hop, dryr = cfg.warm & 1, cfg.warm & 2
    hw = list(range(4)) if dryr else list(range(8))
    dw = list(range(4, 8)) if hop else list(range(8))
    hops = {}
    if hop:
        pads = [i for i in range(il if dryr else iend) if lines[i].strip() == "@@PAD@@"]
        lo, hi = offs[pads[0]] - 200, offs[il if dryr else iend]
        for k in range(len(hw)):
            tgt = lo + (hi - lo) * (k + 0.25) / len(hw)
            hops[min(pads, key=lambda p: abs(offs[p] - tgt))] = k
    cuts = {}
    if dryr:
        pads = [i for i in range(il, iend) if lines[i].strip() == "@@PAD@@"]
        for k in range(1, len(dw)):
            tgt = offs[il] + (offs[iend] - offs[il]) * k / len(dw)
            cuts[min((p for p in pads if p not in cuts), key=lambda p: abs(offs[p] - tgt))] = k
        for k, p in enumerate(sorted(cuts)): cuts[p] = k + 1
    out = []; n = 0
    for i, l in enumerate(lines):
        s = l.strip()
        inside = dryr and il < i < iend
        if s == "@@PAD@@":
            if i in hops:
                out.append(f"L_hop{hops[i]}:"); out.append("    s_cbranch_execz L_wret")
            if i in cuts:
                out.append("    s_cbranch_execz L_wret"); out.append(f"L_seg{cuts[i]}:")
        elif s == "L_late:":
            out.append("L_seg0:")
        elif s == "@@WARM@@":
            if cfg.warm:
                out.append("    s_mov_b64 exec, 0")
                if hop:
                    for k, w in enumerate(hw):
                        out.append(f"    s_cmp_eq_u32 s3, {w}"); out.append(f"    s_cbranch_scc1 L_hop{k}")
                if dryr:
                    for k, w in enumerate(dw):
                        out.append(f"    s_cmp_eq_u32 s3, {w}"); out.append(f"    s_cbranch_scc1 L_seg{k}")
                out.append("L_wret:")
                out.append("    s_mov_b64 exec, -1")
        elif s == "L_end:":
            if dryr: out.append("    s_cbranch_execz L_wret")
            out.append(l)
        elif inside and (s == "s_barrier" or s.startswith("buffer_") or "vmcnt" in s
                         or s.startswith(("s_branch", "s_cbranch_scc", "s_setprio", "s_memtime", "s_memrealtime"))):
            out.append(f"    s_cbranch_execz L_sk{n}"); out.append(l); out.append(f"L_sk{n}:"); n += 1
        else:
            out.append(l)
    return out

def build(cfg, fname):
    g = Gen(cfg)
    g.prologue(); g.phase1(); g.jobs(); g.n8_job(); g.finish()
    lines = resolve([l for l in g.a.lines if l.strip()], cfg)
    open(fname, "w").write(wrap("\n".join(lines) + "\n", 256, 512, LDS_BYTES, 256, 256))

if __name__ == "__main__":
    cfg = Cfg()
    for kv in sys.argv[2:]:
        k, v = kv.split("=")
        setattr(cfg, k, int(v) if v.lstrip("-").isdigit() else v.replace("+", " "))
    build(cfg, sys.argv[1])
```

```python
import sys, re
from common import *
from k1 import isize
import k6
from k6 import (MT, RG, R_OFF, W8_OFF, SC_OFF, ZE_OFF, LDS_BYTES, ROWB, QROW, S_X, S_W, S_SC, S_ZE, S_O, S_TRIP, S_TILE,
                S_OPREV, S_OCUR, S_TP, S_IT, S_TPREV, S_O8, S_T, S_MASK, S_OB, S_LW, S_NB, V_DV, V_WA, V_ST, V_C43, V_SH0,
                V_SH1, V_K128, V_LB, V_XA, V_RB, V_ACA, V_ACB, V_S, V_C, V_TMP, V_R, V_G, V_W, mfma, dequant2,
                unpack_consts, epilogue)

class Cfg:
    xcd_m = 4
    stamps = 0
    st_flags = "sc1"
    ahead = 3
    pre = 1
    warm = 3
    rbar = 3
    prio8 = 0
    fine = 0
    sync0 = 1
    rot = 1
    n8trip = 1
    early = 1
    cpf = 0
    small = 0
    defer = 0
    lastplain = 0
    pA = 0
    pB1 = 0
    init = 2
    ndry = 4

S_GX, S_GW = 4, 7
S_PT = 10
S_PO = 52

class Gen(k6.Gen):
    def block_loads(self, b):
        g, r = b // 3, b % 3
        out = []
        for h in range(2):
            ks = 2 * b + h
            F = V_W + 8 * ks
            out.append(([f"s_add_u32 s{S_T+1}, s{S_GW+g}, {(8*r + 4*h)*QROW}",
                         f"buffer_load_dwordx2 v[{F+6}:{F+7}], v{V_WA}, s[{S_W}:{S_W+3}], s{S_T+1} offen"], ("W", ks)))
        for rg in range(2):
            out.append(([f"s_add_u32 m0, s{S_LW}, {rg*RG + b*1024}",
                         f"s_add_u32 s{S_T}, s{S_GX+g}, {rg*8*1152 + r*128}",
                         f"buffer_load_dwordx4 v{V_DV+rg}, s[{S_X}:{S_X+3}], s{S_T} offen lds"], ("D", b)))
        return out

    def prologue(self):
        a, cfg = self.a, self.cfg
        xm = cfg.xcd_m; xn = 32 // xm; mg = 16 // xm
        if cfg.stamps:
            a("s_memrealtime s[96:97]")
        self.stamp(0)
        a(f"""
        s_cmp_ge_u32 s2, 256
        s_cbranch_scc1 L_done
        s_load_dwordx2 s[{S_X}:{S_X+1}], s[0:1], 0
        s_load_dwordx2 s[{S_W}:{S_W+1}], s[0:1], 8
        s_load_dwordx2 s[{S_SC}:{S_SC+1}], s[0:1], 16
        s_load_dwordx2 s[{S_ZE}:{S_ZE+1}], s[0:1], 24
        s_load_dwordx2 s[{S_O}:{S_O+1}], s[0:1], 40
        v_lshrrev_b32 v1, 6, v0
        v_and_b32 v0, 63, v0
        s_and_b32 s14, s2, 7
        v_readfirstlane_b32 s3, v1
        {"@@EARLY@@" if cfg.early else ""}
        s_lshr_b32 s15, s2, 3
        s_and_b32 s16, s14, {mg-1}
        s_lshr_b32 s17, s14, {mg.bit_length()-1}
        s_mul_i32 s16, s16, {xm}
        s_mul_i32 s17, s17, {xn}
        s_and_b32 s18, s15, {xm-1}
        s_lshr_b32 s19, s15, {xm.bit_length()-1}
        s_add_u32 s16, s16, s18
        s_add_u32 s17, s17, s19
        s_mov_b32 s{S_X+2}, {X_BYTES}
        s_mov_b32 s{S_X+3}, 0x00020000
        s_mov_b32 s{S_W+2}, {QW_BYTES}
        s_mov_b32 s{S_W+3}, 0x00020000
        v_and_b32 v2, 15, v0
        v_lshrrev_b32 v3, 4, v0
        v_bfe_u32 v1, v0, 2, 3
        v_mul_u32_u24 v{V_DV}, 1152, v1
        v_lshrrev_b32 v1, 5, v0
        v_lshl_add_u32 v{V_DV}, v1, 6, v{V_DV}
        v_bfe_i32 v1, v0, 4, 1
        v_xor_b32 v1, v1, v0
        v_and_b32 v1, 3, v1
        v_lshl_add_u32 v{V_DV}, v1, 4, v{V_DV}
        v_xor_b32 v{V_DV+1}, 32, v{V_DV}
        v_mul_u32_u24 v{V_WA}, {QROW}, v3
        v_lshl_add_u32 v{V_WA}, v2, 3, v{V_WA}
        s_mul_i32 s18, s16, {128*1152}
        s_mul_i32 s{S_T}, s3, {16*1152}
        s_add_u32 s18, s18, s{S_T}
        s_mul_i32 s19, s17, {288*4}
        s_lshl_b32 s{S_T}, s3, 7
        s_add_u32 s15, s19, s{S_T}
        s_mul_i32 s{S_LW}, s3, {MT}
        s_add_u32 s13, s16, s17
        s_mul_i32 s{S_T}, s13, 43
        s_lshr_b32 s{S_T}, s{S_T}, 7
        s_mul_i32 s{S_T}, s{S_T}, 3
        s_sub_u32 s13, s13, s{S_T}
        {"s_mov_b32 s13, 0" if not cfg.rot else ""}
        """)
        def grp(g):
            if g: a(f"s_add_u32 s{S_T+2}, s{S_T+2}, 1\ns_cmp_eq_u32 s{S_T+2}, 3\ns_cselect_b32 s{S_T+2}, 0, s{S_T+2}")
            else: a(f"s_mov_b32 s{S_T+2}, s13")
            a(f"""
            s_mul_i32 s{S_GX+g}, s{S_T+2}, 384
            s_add_u32 s{S_GX+g}, s{S_GX+g}, s18
            s_mul_i32 s{S_GW+g}, s{S_T+2}, {24*QROW}
            s_add_u32 s{S_GW+g}, s{S_GW+g}, s15
            """)
        grp(0)
        a("s_waitcnt lgkmcnt(0)")
        self.stamp(1)
        if cfg.early and cfg.ndry == 4:
            bl = self.block_loads(0)
            a("s_cmp_ge_u32 s3, 4\ns_cbranch_scc1 L_b0")
            for g in bl[2:]: self.emit_group(g)
            for rg in range(2):
                a(f"s_add_u32 m0, s{S_LW}, {4*MT + rg*RG}")
                a(f"s_add_u32 s{S_T}, s{S_GX}, {(64 + rg*8)*1152}")
                a(f"buffer_load_dwordx4 v{V_DV+rg}, s[{S_X}:{S_X+3}], s{S_T} offen lds")
                self.q.append(("D", 0))
            a("L_b0:")
            for g in bl[:2]: self.emit_group(g)
        else:
            for b in range(cfg.pre):
                bl = self.block_loads(b)
                for g in bl[2:] + bl[:2]: self.emit_group(g)
        a(f"""
        s_mov_b32 s{S_O+2}, {OUT_BYTES}
        s_mov_b32 s{S_O+3}, 0x00020000
        v_mul_u32_u24 v{V_ST}, {ROWB}, v2
        v_lshl_add_u32 v{V_ST}, v3, 4, v{V_ST}
        v_lshrrev_b32 v1, 3, v2
        v_mul_u32_u24 v{V_LB}, {RG}, v1
        v_and_b32 v1, 7, v2
        v_lshl_add_u32 v{V_LB}, v1, 6, v{V_LB}
        v_lshrrev_b32 v1, 2, v2
        v_sub_u32 v1, 0, v1
        v_xor_b32 v1, v1, v3
        v_and_b32 v1, 3, v1
        v_lshl_add_u32 v{V_LB}, v1, 4, v{V_LB}
        v_mov_b32 v{V_XA}, v{V_LB}
        v_mov_b32 v{V_XA+1}, v{V_LB}
        v_lshlrev_b32 v{V_RB}, 2, v2
        v_add_u32 v{V_RB}, {R_OFF}, v{V_RB}
        v_mov_b32 v16, v{V_RB}
        v_mov_b32 v17, v{V_RB}
        """)
        if cfg.cpf:
            a(f"""
            s_getpc_b64 s[{S_T}:{S_T+1}]
            v_lshlrev_b32 v58, 7, v0
            s_lshl_b32 s{S_T+3}, s3, 10
            v_cmp_gt_u32 vcc, {cfg.cpf}, v0
            s_mul_i32 s{S_T+3}, s3, {cfg.cpf*128}
            v_add_u32 v58, s{S_T+3}, v58
            v_mov_b32 v59, s{S_T+1}
            s_mov_b64 exec, vcc
            v_add_co_u32 v58, vcc, s{S_T}, v58
            v_addc_co_u32 v59, vcc, 0, v59, vcc
            global_load_dword v58, v[58:59], off
            s_mov_b64 exec, -1
            """)
            self.q.append(("C", 0))
        if cfg.sync0: a("s_barrier")
        a("@@WARM@@")
        self.stamp(2)
        for b in range(cfg.pre, cfg.init):
            bl = self.block_loads(b)
            for g in bl[2:] + bl[:2]: self.emit_group(g)
        a(f"s_mov_b32 s{S_T+2}, s13")
        grp(1); grp(2)
        a(f"""
        s_mov_b32 s{S_SC+2}, {SZ_BYTES}
        s_mov_b32 s{S_SC+3}, 0x00020000
        s_mov_b32 s{S_ZE+2}, {SZ_BYTES}
        s_mov_b32 s{S_ZE+3}, 0x00020000
        s_mul_i32 s{S_NB}, s17, {288*2}
        s_mov_b32 s{S_MASK}, 0x000f000f
        s_mul_i32 s{S_OB}, s16, {128*ROWB}
        s_add_u32 s{S_OB}, s{S_OB}, s{S_NB}
        s_and_b32 s14, s3, 3
        s_mul_i32 s{S_O8}, s14, {32*ROWB}
        s_add_u32 s{S_O8}, s{S_O8}, s{S_OB}
        s_add_u32 s{S_O8}, s{S_O8}, 512
        s_add_u32 s{S_O8+1}, s{S_O8}, {16*ROWB}
        s_lshl_b32 s{S_T}, s3, 6
        s_add_u32 s{S_OB}, s{S_OB}, s{S_T}
        v_mov_b32 v{V_C43}, 0x43004300
        v_mov_b32 v{V_SH0}, 0x00040000
        v_mov_b32 v{V_SH1}, 0x000c0008
        v_mov_b32 v{V_K128}, 0x43000000
        v_lshrrev_b32 v1, 3, v0
        v_mul_u32_u24 v18, {QROW}, v1
        v_and_b32 v1, 7, v0
        v_lshl_add_u32 v18, v1, 4, v18
        v_lshlrev_b32 v19, 4, v0
        s_mov_b32 s{S_TRIP}, 0
        s_lshr_b32 s55, s3, 2
        """)
        self.PA = [V_XA, V_XA + 1, 16, 17]
        for u in range(4):
            st = S_PT + u if u < 3 else S_TPREV
            so = S_PO + u if u < 3 else S_OPREV
            a(f"s_add_u32 s{st}, s3, {u}\ns_and_b32 s{st}, s{st}, 7")
            for i in self.tile_setup(st, self.PA[u], so): a(i)

    def phase1(self):
        a, cfg = self.a, self.cfg
        AH = cfg.ahead
        ONE, RS = V_G, V_G + 4
        ACP = V_G + 24
        self.ACP, self.RS = ACP, RS
        ACC = [ACP, ACP + 8, ACP + 16, V_ACB]
        ring = [V_S, V_S + 4, V_C, V_C + 4, V_ACA, V_ACA + 4]
        for i in range(4): a(f"v_mov_b32 v{ONE+i}, 0x3f803f80")
        if cfg.pB1:
            a(f"s_cmp_lt_u32 s3, 4\ns_cbranch_scc1 L_pb\ns_setprio {cfg.pB1}\nL_pb:")
        self.wait_vm(("D", 0))
        a("s_barrier")
        self.stamp(3)
        NR, PF = 6, 4
        def rd(f):
            ks, u = f // 4, f % 4
            r = ring[f % NR]
            return f"ds_read_b128 v[{r}:{r+3}], v{self.PA[u]} offset:{ks*512}"
        for f in range(PF): a(rd(f))
        self.wait_vm(("W", 1))
        for i in dequant2(V_W): a(i)
        dq = dequant2(V_W + 8)
        for i in dq[:8]: a(i)
        carry = dq[8:]
        g1 = [f"s_lshl_b32 s{S_T}, s3, 10", f"s_add_u32 m0, s{S_T}, {W8_OFF}",
              f"s_mul_i32 s{S_T}, s13, 3", f"s_add_u32 s{S_T}, s{S_T}, s3", f"s_cmp_ge_u32 s{S_T}, 9",
              f"s_cselect_b32 s{S_T+1}, 9, 0", f"s_sub_u32 s{S_T}, s{S_T}, s{S_T+1}", f"s_mul_i32 s{S_T}, s{S_T}, {8*QROW}",
              f"s_add_u32 s{S_T}, s{S_T}, s19", f"s_add_u32 s{S_T}, s{S_T}, 1024",
              f"buffer_load_dwordx4 v18, s[{S_W}:{S_W+3}], s{S_T} offen lds"]
        self.nissued = 4 * cfg.init
        for ks in range(18):
            j, half = ks >> 1, ks & 1
            if half == 1 and j + 1 < 9:
                self.wait_vm(("D", j + 1))
                a("s_barrier")
                if cfg.fine and j in (0, 2, 5): self.stamp({0: 8, 2: 9, 5: 10}[j])
            if getattr(cfg, "mid", None) is not None: a(f"@@STEP{ks}")
            nxt = dequant2(V_W + 8 * (ks + 2)) if ks + 2 < 18 else []
            pool = carry + ([("W", ks + 2)] if nxt else []) + nxt[:8]
            carry = nxt[8:]
            loads = []
            want = min(36, 4 * (j + AH) + 2 * (half + 1))
            while self.nissued < want and len(loads) < 4:
                b, r = self.nissued // 4, self.nissued % 4
                loads.append(self.block_loads(b)[(2, 0, 3, 1)[r]]); self.nissued += 1
            if j + AH == 9 and half == 0:
                assert not loads
                loads = [(g1, ("X", 0))]
                a(f"""
                s_cmp_gt_u32 s3, 2
                s_cbranch_scc1 L_x3
                s_cmp_eq_u32 s3, 1
                s_cbranch_scc1 L_x1
                s_cmp_eq_u32 s3, 2
                s_cbranch_scc1 L_x2
                s_mov_b32 m0, {W8_OFF + 8192}
                s_add_u32 s{S_T}, s{S_GW+2}, {16*QROW + 1024}
                buffer_load_dwordx4 v18, s[{S_W}:{S_W+3}], s{S_T} offen lds
                s_branch L_x3
                L_x1:
                s_mov_b32 m0, {SC_OFF}
                s_nop 0
                buffer_load_dwordx4 v19, s[{S_SC}:{S_SC+3}], s{S_NB} offen lds
                s_branch L_x3
                L_x2:
                s_mov_b32 m0, {ZE_OFF}
                s_nop 0
                buffer_load_dwordx4 v19, s[{S_ZE}:{S_ZE+3}], s{S_NB} offen lds
                L_x3:
                """)
            F = V_W + 8 * ks
            fst = ks == 0
            slots = []
            for u in range(4):
                f = 4 * ks + u
                x = ring[f % NR]
                slots.append(([f"s_waitcnt lgkmcnt({min(PF - 1, 71 - f)})", mfma(ACC[u], F, x, fst)], [rd(f + PF)] if f + PF < 72 else []))
                slots.append(([mfma(ACC[u] + 4, F + 4, x, fst)], []))
                if u == 0: slots.append(([mfma(RS, ONE, x, fst)], []))
            nl = len(loads)
            total = sum(1 for x in pool if isinstance(x, str)) + nl + sum(len(s[1]) for s in slots)
            done = 0
            lpos = {2: 0, 6: 1} if nl <= 2 else {1: 0, 2: 1, 4: 2, 6: 3}
            def pop():
                x = pool.pop(0)
                if isinstance(x, tuple):
                    self.wait_vm(x); x = pool.pop(0)
                a(x)
            for i, (pre, forced) in enumerate(slots):
                for x in pre: a(x)
                for x in forced: a(x); done += 1
                if i in lpos and lpos[i] < nl:
                    self.emit_group(loads[lpos[i]]); done += 1
                target = total * (i + 1) / len(slots)
                while pool and done + 0.5 <= target:
                    pop(); done += 1
                self.pad()
            while pool: pop()
        self.stamp(4)

    def jobs(self):
        a, cfg = self.a, self.cfg
        self.late = True
        XR = V_G + 8
        RAW = V_G + 48
        a(f"""
        s_add_u32 s{S_TILE}, s{S_TPREV}, 1
        s_and_b32 s{S_TILE}, s{S_TILE}, 7
        """)
        for i in self.tile_setup(S_TILE, V_XA, S_OCUR): a(i)
        if cfg.pA or cfg.pB1:
            a(f"s_setprio 0\ns_cmp_ge_u32 s3, 4\ns_cbranch_scc1 L_pa\ns_setprio {cfg.pA}\nL_pa:")
        a(f"""
        s_lshl_b32 s{S_T}, s3, 6
        v_add_u32 v16, s{S_T}, v{V_RB}
        ds_write_b32 v16, v{self.RS}
        """)
        if not cfg.small: a("L_late:")
        a("L_pref:")
        for p in range(3):
            a(f"ds_read_b128 v[{XR+4*p}:{XR+4*p+3}], v{V_XA} offset:{512*p}")
        a("L_trip:")
        self.pad()
        RB = cfg.rbar
        for jb in range(2):
            acc, prev = (V_ACA, V_ACB) if jb == 0 else (V_ACB, V_ACA)
            va, vn = V_XA + jb, V_XA + 1 - jb
            fill = epilogue(prev, V_S, V_C, V_R, V_TMP, S_OPREV, cfg)
            for ks in range(18):
                p = 18 * jb + ks
                q = ks + 3
                if jb == 0 and ks == RB:
                    a(f"""
                    s_cmp_lg_u32 s{S_TRIP}, 0
                    s_cbranch_scc1 L_nr
                    s_lshl_b32 s{S_T}, s3, 6
                    s_add_u32 s{S_T}, s{S_T}, {SC_OFF}
                    v_lshlrev_b32 v17, 4, v3
                    v_add_u32 v17, s{S_T}, v17
                    s_waitcnt vmcnt(0) lgkmcnt(0)
                    s_barrier
                    ds_read_b128 v[{RAW}:{RAW+3}], v17
                    ds_read_b128 v[{V_G}:{V_G+3}], v17 offset:1024
                    s_lshl_b32 s{S_T}, s{S_PT+1}, 6
                    v_add_u32 v16, s{S_T}, v{V_RB}
                    ds_read_b32 v{self.RS+1}, v16
                    s_lshl_b32 s{S_T}, s{S_PT+2}, 6
                    v_add_u32 v16, s{S_T}, v{V_RB}
                    ds_read_b32 v{self.RS+2}, v16
                    s_waitcnt lgkmcnt(2)
                    """)
                    for i in unpack_consts(RAW, V_G, V_S, V_C): a(i)
                    self.pad()
                    for i in epilogue(self.ACP, V_S, V_C, self.RS, V_TMP, S_PO, cfg): a(i)
                    a("s_waitcnt lgkmcnt(0)")
                    self.stamp(5)
                    a("L_nr:")
                if ks == RB:
                    a(f"s_lshl_b32 s{S_T}, s{S_TPREV}, 6")
                    a(f"v_add_u32 v16, s{S_T}, v{V_RB}")
                    a(f"ds_read_b32 v{V_R}, v16")
                if ks == 12:
                    a(f"s_add_u32 s{S_T+3}, s{S_TILE}, 1\ns_and_b32 s{S_T+3}, s{S_T+3}, 7\ns_mul_i32 s{S_T+2}, s{S_T+3}, {MT}")
                    a(f"v_add_u32 v{vn}, s{S_T+2}, v{V_LB}")
                r = XR + 4 * ((p + 3) % 4)
                a(f"s_waitcnt lgkmcnt({3 if RB <= ks < RB + 3 else 2})")
                x = XR + 4 * (p % 4)
                a(mfma(acc, V_W + 8 * ks, x, first=(ks == 0)))
                a(f"ds_read_b128 v[{r}:{r+3}], v{va if q < 18 else vn} offset:{512*(q % 18)}")
                if ks >= RB + 4 and fill: a(fill.pop(0))
                a(mfma(acc + 4, V_W + 8 * ks + 4, x, first=(ks == 0)))
                if ks >= RB + 4 and fill: a(fill.pop(0))
                self.pad()
            while fill: a(fill.pop(0))
            a(f"""
            s_mov_b32 s{S_TPREV}, s{S_TILE}
            s_mov_b32 s{S_OPREV}, s{S_OCUR}
            s_mov_b32 s{S_TILE}, s{S_T+3}
            s_mul_i32 s{S_OCUR}, s{S_TILE}, {16*ROWB}
            s_add_u32 s{S_OCUR}, s{S_OCUR}, s{S_OB}
            s_cmp_lg_u32 s{S_TRIP}, {"s55" if cfg.defer else "0"}
            s_cbranch_scc1 L_np{jb}
            """)
            for i in epilogue(self.ACP + 8 * (jb + 1), V_S, V_C, self.RS + jb + 1, V_TMP, S_PO + jb + 1, cfg): a(i)
            if jb == 0: self.stamp(6)
            a(f"L_np{jb}:")
            self.pad()
        a(f"""
        s_add_u32 s{S_TRIP}, s{S_TRIP}, 1
        s_lshl_b32 s{S_T}, s3, 6
        s_and_b32 s{S_T}, s{S_T}, 0x100
        s_add_u32 s{S_T}, s{S_T}, s{S_TRIP}
        s_cmp_eq_u32 s{S_T}, 1
        s_cbranch_scc1 L_n8job
        s_cmp_lt_u32 s{S_TRIP}, 2
        s_cbranch_scc1 L_trip
        """)
        if cfg.small: a("L_late:")
        self.stamp(8)
        a(f"""
        s_lshl_b32 s{S_T}, s{S_TPREV}, 6
        v_add_u32 v16, s{S_T}, v{V_RB}
        ds_read_b32 v{V_R}, v16
        s_waitcnt lgkmcnt(0)
        """)
        for i in epilogue(V_ACB, V_S, V_C, V_R, V_TMP, S_OPREV, cfg):
            a(i.replace(" " + cfg.st_flags, "") if cfg.lastplain else i)
        self.stamp(9)
        a("s_branch L_end")
        self.pad()

def build(cfg, fname):
    g = Gen(cfg)
    g.prologue(); g.phase1(); g.jobs(); g.n8_job(); g.finish()
    lines = [l for l in g.a.lines if l.strip()]
    if cfg.early:
        class C2: warm = 3 if cfg.ndry == 4 else 2
        lines = k6.resolve(lines, C2)
        i0 = next(i for i, l in enumerate(lines) if l.strip() == "s_mov_b64 exec, 0")
        i1 = next(i for i, l in enumerate(lines) if l.strip() == "L_wret:")
        disp = lines[i0 + 1:i1]
        hopd, dryd = (disp[:8], disp[8:]) if cfg.ndry == 4 else ([], disp)
        il = next(i for i, l in enumerate(lines) if l.strip() == "L_seg0:")
        for i in range(il, len(lines)):
            lines[i] = lines[i].replace("L_wret", "L_eret")
        mid = ([lines[i0]] + hopd + lines[i1:i1 + 2]) if cfg.warm & 1 else ["L_wret:"]
        lines[i0:i1 + 2] = mid
        ie = next(i for i, l in enumerate(lines) if l.strip() == "@@EARLY@@")
        init = [f"    v_mov_b32 v{r}, 0" for r in (13, 14, 15, 16, 17)]
        lines[ie:ie + 1] = init + ["    s_mov_b64 exec, 0"] + dryd + ["L_eret:", "    s_mov_b64 exec, -1"]
    else:
        lines = k6.resolve(lines, cfg)
    open(fname, "w").write(wrap("\n".join(lines) + "\n", 256, 512, LDS_BYTES, 256, 256))

if __name__ == "__main__":
    cfg = Cfg()
    for kv in sys.argv[2:]:
        k, v = kv.split("=")
        setattr(cfg, k, int(v) if v.lstrip("-").isdigit() else v.replace("+", " "))
    build(cfg, sys.argv[1])
```

```python
import sys, re
from common import *
import k6, k8
from k8 import *
from k6 import S_TP

class Cfg(k8.Cfg):
    warm = 2
    cpf = 9
    small = 1
    early = 0
    rbar = 1
    pA = 0
    mid = 1
    midA = 5
    midB = 9

S_SH0, S_SH1, S_IDX = 56, 57, 68
S_F = 69
S_FT = 71

def dequant2s(F, w0, w1):
    out = []
    for base, w in ((F, w0), (F + 4, w1)):
        out += [
            f"v_pk_lshrrev_b16 v{base}, s{S_SH0}, v{w} op_sel:[0,0] op_sel_hi:[1,0]",
            f"v_pk_lshrrev_b16 v{base+1}, s{S_SH1}, v{w} op_sel:[0,0] op_sel_hi:[1,0]",
            f"v_pk_lshrrev_b16 v{base+2}, s{S_SH0}, v{w} op_sel:[0,1] op_sel_hi:[1,1]",
            f"v_pk_lshrrev_b16 v{base+3}, s{S_SH1}, v{w} op_sel:[0,1] op_sel_hi:[1,1]",
        ]
        out += [f"v_and_or_b32 v{base+i}, s{S_MASK}, v{base+i}, v{V_C43}" for i in range(4)]
    return out

class Gen(k8.Gen):
    def prologue(self):
        k8.Gen.prologue(self)
        L = self.a.lines
        i = next(i for i, l in enumerate(L) if l.strip() == f"s_add_u32 s{S_PT}, s3, 0")
        L[i:i] = [f"    s_lshl_b32 s{S_TP}, s14, 1", f"    s_add_u32 s{S_TP}, s{S_TP}, s55",
                  f"    s_mov_b32 s{S_SH0}, 0x00040000", f"    s_mov_b32 s{S_SH1}, 0x000c0008"]
        for j in range(i, len(L)):
            L[j] = re.sub(r"(s_add_u32 s\d+), s3, ([0-3])$", rf"\1, s{S_TP}, \2", L[j])

    def jobs(self):
        a, cfg = self.a, self.cfg
        self.late = True
        XR = V_G + 8
        RAW = V_G + 48
        a(f"""
        s_mov_b32 s{S_TRIP}, 0
        s_add_u32 s{S_TPREV}, s{S_TP}, 3
        s_and_b32 s{S_TPREV}, s{S_TPREV}, 7
        s_mul_i32 s{S_OPREV}, s{S_TPREV}, {16*ROWB}
        s_add_u32 s{S_OPREV}, s{S_OPREV}, s{S_OB}
        """)
        a(f"s_add_u32 s{S_TILE}, s{S_TPREV}, 1\ns_and_b32 s{S_TILE}, s{S_TILE}, 7")
        for i in self.tile_setup(S_TILE, V_XA, S_OCUR): a(i)
        if cfg.pA:
            a(f"s_cmp_ge_u32 s3, 4\ns_cbranch_scc1 L_pa\ns_setprio {cfg.pA}\nL_pa:")
        a(f"""
        s_lshl_b32 s{S_T}, s{S_TP}, 6
        v_add_u32 v16, s{S_T}, v{V_RB}
        ds_write_b32 v16, v{self.RS}
        """)
        for p in range(3):
            a(f"ds_read_b128 v[{XR+4*p}:{XR+4*p+3}], v{V_XA} offset:{512*p}")
        a("L_trip:")
        RB = cfg.rbar
        for jb in range(2):
            acc, prev = (V_ACA, V_ACB) if jb == 0 else (V_ACB, V_ACA)
            va, vn = V_XA + jb, V_XA + 1 - jb
            fill = epilogue(prev, V_S, V_C, V_R, V_TMP, S_OPREV, cfg)
            if jb == 1: a("L_jobB:")
            for ks in range(18):
                p = 18 * jb + ks
                q = ks + 3
                if jb == 0 and ks == RB:
                    a(f"""
                    s_cmp_lg_u32 s{S_TRIP}, 0
                    s_cbranch_scc1 L_nr
                    s_lshl_b32 s{S_T}, s3, 6
                    s_add_u32 s{S_T}, s{S_T}, {SC_OFF}
                    v_lshlrev_b32 v17, 4, v3
                    v_add_u32 v17, s{S_T}, v17
                    s_waitcnt vmcnt(0) lgkmcnt(0)
                    s_barrier
                    ds_read_b128 v[{RAW}:{RAW+3}], v17
                    ds_read_b128 v[{V_G}:{V_G+3}], v17 offset:1024
                    s_lshl_b32 s{S_T}, s{S_PT+1}, 6
                    v_add_u32 v16, s{S_T}, v{V_RB}
                    ds_read_b32 v{self.RS+1}, v16
                    s_lshl_b32 s{S_T}, s{S_PT+2}, 6
                    v_add_u32 v16, s{S_T}, v{V_RB}
                    ds_read_b32 v{self.RS+2}, v16
                    s_lshl_b32 s{S_T}, s{S_TILE}, 6
                    v_add_u32 v16, s{S_T}, v{V_RB}
                    ds_read_b32 v{self.RS+3}, v16
                    s_waitcnt lgkmcnt(3)
                    """)
                    for i in unpack_consts(RAW, V_G, V_S, V_C): a(i)
                    for i in epilogue(self.ACP, V_S, V_C, self.RS, V_TMP, S_PO, cfg): a(i)
                    a("s_waitcnt lgkmcnt(0)")
                    self.stamp(5)
                    a("L_nr:")
                if ks == RB:
                    a(f"s_lshl_b32 s{S_T}, s{S_TPREV}, 6")
                    a(f"v_add_u32 v16, s{S_T}, v{V_RB}")
                    a(f"ds_read_b32 v{V_R}, v16")
                if ks == 12:
                    a(f"s_add_u32 s{S_T+3}, s{S_TILE}, 1\ns_and_b32 s{S_T+3}, s{S_T+3}, 7\ns_mul_i32 s{S_T+2}, s{S_T+3}, {MT}")
                    a(f"v_add_u32 v{vn}, s{S_T+2}, v{V_LB}")
                r = XR + 4 * ((p + 3) % 4)
                a(f"s_waitcnt lgkmcnt({3 if RB <= ks < RB + 3 else 2})")
                x = XR + 4 * (p % 4)
                a(mfma(acc, V_W + 8 * ks, x, first=(ks == 0)))
                a(f"ds_read_b128 v[{r}:{r+3}], v{va if q < 18 else vn} offset:{512*(q % 18)}")
                if ks >= RB + 4 and fill: a(fill.pop(0))
                a(mfma(acc + 4, V_W + 8 * ks + 4, x, first=(ks == 0)))
                if ks >= RB + 4 and fill: a(fill.pop(0))
            while fill: a(fill.pop(0))
            a(f"""
            s_mov_b32 s{S_TPREV}, s{S_TILE}
            s_mov_b32 s{S_OPREV}, s{S_OCUR}
            s_mov_b32 s{S_TILE}, s{S_T+3}
            s_mul_i32 s{S_OCUR}, s{S_TILE}, {16*ROWB}
            s_add_u32 s{S_OCUR}, s{S_OCUR}, s{S_OB}
            s_cmp_lg_u32 s{S_TRIP}, 0
            s_cbranch_scc1 L_np{jb}
            """)
            for i in epilogue(self.ACP + 8 * (jb + 1), V_S, V_C, self.RS + jb + 1, V_TMP, S_PO + jb + 1, cfg): a(i)
            if jb == 0:
                self.stamp(6)
                a("s_cmp_lt_u32 s3, 4\ns_cbranch_scc1 L_fused")
            a(f"L_np{jb}:")
        a(f"""
        s_add_u32 s{S_TRIP}, s{S_TRIP}, 1
        s_cmp_lt_u32 s{S_TRIP}, 2
        s_cbranch_scc1 L_trip
        """)
        a("L_late:")
        self.stamp(8)
        a(f"""
        s_lshl_b32 s{S_T}, s{S_TPREV}, 6
        v_add_u32 v16, s{S_T}, v{V_RB}
        ds_read_b32 v{V_R}, v16
        s_waitcnt lgkmcnt(0)
        """)
        for i in epilogue(V_ACB, V_S, V_C, V_R, V_TMP, S_OPREV, cfg): a(i)
        self.stamp(9)
        a("s_branch L_end")
        self.pad()

    def n8_job(self):
        a, cfg = self.a, self.cfg
        ACC8 = V_G
        XF = V_G + 16
        WF = [V_G + 32, V_G + 40]
        PK = [V_G + 48, V_G + 50]
        XA0, XA1, WA8 = V_XA + 1, V_XA, 17
        a("L_fused:")
        for i in epilogue(self.ACP + 16, V_S, V_C, self.RS + 2, V_TMP, S_PO + 2, cfg): a(i)
        self.pad()
        for i in epilogue(V_ACA, V_S, V_C, self.RS + 3, V_TMP, S_OPREV, cfg): a(i)
        self.pad()
        a(f"""
        s_add_u32 s{S_FT}, s{S_TILE}, 1
        s_and_b32 s{S_FT}, s{S_FT}, 7
        """)
        for i in self.tile_setup(S_FT, XA1, S_F): a(i)
        a(f"""
        v_lshlrev_b32 v{WA8}, 3, v0
        v_add_u32 v{WA8}, {W8_OFF}, v{WA8}
        s_waitcnt lgkmcnt(0)
        ds_read_b64 v[{PK[0]}:{PK[0]+1}], v{WA8}
        ds_read_b128 v[{XF}:{XF+3}], v{XA0}
        ds_read_b64 v[{PK[1]}:{PK[1]+1}], v{WA8} offset:512
        ds_read_b128 v[{XF+4}:{XF+7}], v{XA1}
        """)
        for r in range(16):
            a(f"v_mov_b32 v{ACC8+r}, 0")
            a(f"v_mov_b32 v{V_ACA+r}, 0")
        self.pad()
        a("s_waitcnt lgkmcnt(3)")
        for i in dequant2s(WF[0], PK[0], PK[0] + 1): a(i)
        a(f"s_mov_b32 s{S_IDX}, 0")
        self.pad()
        a("L_n8:")
        for h in range(2):
            cur, nxt = WF[h], WF[1 - h]
            xc, xn = XF + 8 * h, XF + 8 * (1 - h)
            dq = dequant2s(nxt, PK[1 - h], PK[1 - h] + 1)
            rds = [f"ds_read_b128 v[{xn}:{xn+3}], v{XA0} offset:{512*(h+1)}",
                   f"ds_read_b64 v[{PK[h]}:{PK[h]+1}], v{WA8} offset:{1024 + 512*h}",
                   f"ds_read_b128 v[{xn+4}:{xn+7}], v{XA1} offset:{512*(h+1)}"]
            F = V_W + 8 * h
            seq = [(ACC8, cur, xc), (ACC8 + 4, cur + 4, xc), (ACC8 + 8, cur, xc + 4), (ACC8 + 12, cur + 4, xc + 4),
                   (V_ACA, F, xc), (V_ACA + 4, F + 4, xc), (V_ACB, F, xc + 4), (V_ACB + 4, F + 4, xc + 4)]
            gaps = [[rds[0]] + dq[0:2], [rds[1]] + dq[2:4], [rds[2]] + dq[4:6], dq[6:8] + [f"s_set_gpr_idx_on s{S_IDX}, gpr_idx(SRC0)"],
                    dq[8:11], dq[11:14], dq[14:16], ["s_set_gpr_idx_off"]]
            a("s_waitcnt lgkmcnt(0)")
            for k, (d, aa, bb) in enumerate(seq):
                a(mfma(d, aa, bb))
                for i in gaps[k]: a(i)
                if k in (1, 7): self.pad()
        S8, C8 = WF[0], WF[1]
        a(f"""
        v_add_u32 v{XA0}, 1024, v{XA0}
        v_add_u32 v{XA1}, 1024, v{XA1}
        v_add_u32 v{WA8}, 1024, v{WA8}
        s_add_u32 s{S_IDX}, s{S_IDX}, 16
        s_cmp_lt_u32 s{S_IDX}, 144
        s_cbranch_scc1 L_n8
        v_lshlrev_b32 v17, 4, v3
        v_add_u32 v17, {SC_OFF + 512}, v17
        s_lshl_b32 s{S_T}, s{S_TILE}, 6
        v_add_u32 v16, s{S_T}, v{V_RB}
        s_lshl_b32 s{S_T}, s{S_FT}, 6
        v_add_u32 v18, s{S_T}, v{V_RB}
        s_waitcnt lgkmcnt(0)
        ds_read_b32 v{V_R+1}, v18
        ds_read_b128 v[{XF}:{XF+3}], v17
        ds_read_b128 v[{XF+4}:{XF+7}], v17 offset:1024
        ds_read_b32 v{V_R}, v16
        s_lshl_b32 s{S_T+1}, s3, 6
        s_sub_u32 s{S_O8}, s{S_OCUR}, s{S_T+1}
        s_add_u32 s{S_O8}, s{S_O8}, 512
        s_sub_u32 s{S_O8+1}, s{S_F}, s{S_T+1}
        s_add_u32 s{S_O8+1}, s{S_O8+1}, 512
        s_waitcnt lgkmcnt(3)
        """)
        self.pad()
        for i in epilogue(V_ACB, V_S, V_C, V_R + 1, V_TMP, S_F, cfg): a(i)
        self.pad()
        a("s_waitcnt lgkmcnt(0)")
        for i in unpack_consts(XF, XF + 4, S8, C8): a(i)
        self.pad()
        for u in range(2):
            for i in epilogue(ACC8 + 8 * u, S8, C8, V_R + u, V_TMP, S_O8 + u, cfg): a(i)
            self.pad()
        self.stamp(7)
        XR = V_G + 8
        a(f"""
        s_mov_b32 s{S_TPREV}, s{S_TILE}
        s_mov_b32 s{S_OPREV}, s{S_OCUR}
        s_add_u32 s{S_TILE}, s{S_FT}, 1
        s_and_b32 s{S_TILE}, s{S_TILE}, 7
        s_mov_b32 s{S_TRIP}, 1
        """)
        for i in self.tile_setup(S_TILE, V_XA + 1, S_OCUR): a(i)
        for p in range(3):
            r = XR + 4 * ((18 + p) % 4)
            a(f"ds_read_b128 v[{r}:{r+3}], v{V_XA+1} offset:{512*p}")
        a("s_branch L_jobB")

def resolve_mid(lines, cfg):
    from k1 import isize
    il = next(i for i, l in enumerate(lines) if l.strip() == "L_late:")
    iend = next(i for i, l in enumerate(lines) if l.strip() == "L_end:")
    i0 = next(i for i, l in enumerate(lines) if l.strip() == "L_n8:")
    i1 = max(i for i, l in enumerate(lines) if "s_set_gpr_idx_off" in l)
    body = []; acc = 0; n = 0
    for i in range(i0 + 1, i1 + 1):
        l = lines[i]
        if l.strip() == "@@PAD@@": continue
        if acc == 0 or acc + isize(l) > 56:
            body.append(f"L_ch{n}:"); body.append(f"    s_cbranch_execz L_ch{n+1}"); n += 1; acc = 4
        body.append(l); acc += isize(l)
    body.append(f"L_ch{n}:"); body.append("@@PAD@@")
    lines = lines[:i0 + 1] + body + lines[i1 + 1:]
    iend = next(i for i, l in enumerate(lines) if l.strip() == "L_end:")
    offs = []; off = 0
    for l in lines:
        offs.append(off); off += isize(l)
    pads = [i for i in range(il, iend) if lines[i].strip() == "@@PAD@@"]
    cuts = {}
    for k in range(1, 8):
        tgt = offs[il] + (offs[iend] - offs[il]) * k / 8
        p = min((p for p in pads if p not in cuts), key=lambda p: abs(offs[p] - tgt))
        cuts[p] = None
    for k, p in enumerate(sorted(cuts)): cuts[p] = k + 1
    ret = lambda k: "L_wrA" if k < 4 else "L_wrB"
    out = []; n = 0; step = -1
    for i, l in enumerate(lines):
        s = l.strip()
        inside = il < i < iend
        if s.startswith("@@STEP"):
            step = int(s[6:])
            for tag, st, base in (("A", cfg.midA, 0), ("B", cfg.midB, 4)):
                if step == st:
                    out.append("    s_mov_b64 exec, 0")
                    for w in range(base, base + 4):
                        out.append(f"    s_cmp_eq_u32 s3, {w}"); out.append(f"    s_cbranch_scc1 L_seg{w}")
                    out.append(f"L_wr{tag}:"); out.append("    s_mov_b64 exec, -1")
        elif s == "@@PAD@@":
            if i in cuts:
                out.append(f"    s_cbranch_execz {ret(cuts[i]-1)}"); out.append(f"L_seg{cuts[i]}:")
        elif s == "L_late:": out.append("L_seg0:")
        elif s == "@@WARM@@": pass
        elif s == "L_end:":
            out.append(f"    s_cbranch_execz {ret(7)}"); out.append(l)
        elif inside and (s == "s_barrier" or s.startswith("buffer_") or "vmcnt" in s or "lgkmcnt" in s and not lines[i-1].strip().startswith("s_cbranch_execz L_ch") and not (i0 < i < i0 + len(body))
                         or s.startswith(("s_branch", "s_cbranch_scc", "s_setprio", "s_memtime", "s_memrealtime"))):
            out.append(f"    s_cbranch_execz L_sk{n}"); out.append(l); out.append(f"L_sk{n}:"); n += 1
        else:
            out.append(l)
    return out

def build(cfg, fname):
    g = Gen(cfg)
    g.prologue(); g.phase1(); g.jobs(); g.n8_job(); g.finish()
    lines = [l for l in g.a.lines if l.strip()]
    if cfg.mid:
        lines = resolve_mid(lines, cfg)
        open(fname, "w").write(wrap("\n".join(lines) + "\n", 256, 512, LDS_BYTES, 256, 256))
        return
    lines = [l for l in lines if not l.strip().startswith("@@STEP")]
    lines = k6.resolve(lines, cfg)
    out = []; n = 0
    for l in lines:
        if "s_set_gpr_idx_on" in l and cfg.warm & 2:
            out += [f"    s_cbranch_execz L_gi{n}", l, f"L_gi{n}:"]; n += 1
        else: out.append(l)
    open(fname, "w").write(wrap("\n".join(out) + "\n", 256, 512, LDS_BYTES, 256, 256))

if __name__ == "__main__":
    cfg = Cfg()
    for kv in sys.argv[2:]:
        k, v = kv.split("=")
        setattr(cfg, k, int(v) if v.lstrip("-").isdigit() else v.replace("+", " "))
    build(cfg, sys.argv[1])
```

```python
import sys, re
from common import *
import k6, k8, k9, k10
from k10 import *
from k9 import S_SH0, S_SH1, S_IDX, S_F, S_FT, dequant2s
from k6 import S_TP

class Cfg(k10.Cfg):
    cpf = 10

class Gen(k10.Gen):
    def prologue(self):
        k9.Gen.prologue(self)

    def phase1(self):
        n = len(self.a.lines)
        k10.Gen.phase1(self)
        L = self.a.lines
        i = next(i for i in range(n, len(L)) if "ds_write_b32" in L[i])
        j = max(k for k in range(n, i) if L[k].strip() == f"s_lshl_b32 s{S_T}, s3, 6")
        L[j] = f"    s_lshl_b32 s{S_T}, s{S_TP}, 6"

    def jobs(self):
        n = len(self.a.lines)
        k10.Gen.jobs(self)
        L = self.a.lines
        i = next(i for i in range(n, len(L)) if L[i].strip() == "L_np0:")
        L[i:i + 1] = ["    s_cmp_lt_u32 s3, 4", "    s_cbranch_scc1 L_fused", "L_np0:", "L_jobB:"]
        i = next(i for i in range(n, len(L)) if L[i].strip() == "s_cbranch_scc1 L_n8job")
        del L[i - 4:i + 1]
        i = next(i for i in range(n, len(L)) if L[i].strip() == "s_branch L_trip")
        del L[i:i + 5]

    def n8_job(self):
        a, cfg = self.a, self.cfg
        ACC8 = V_G
        XF = V_G + 16
        WF = [V_G + 32, V_G + 40]
        PK = [V_G + 48, V_G + 50]
        XA0, XA1, WA8 = V_XA + 1, V_XA, 17
        R0, R1 = V_R + 1, V_R
        a("L_fused:")
        a(f"""
        s_add_u32 s{S_FT}, s{S_TILE}, 1
        s_and_b32 s{S_FT}, s{S_FT}, 7
        """)
        for i in self.tile_setup(S_FT, XA1, S_F): a(i)
        a(f"""
        v_lshlrev_b32 v{WA8}, 3, v0
        v_add_u32 v{WA8}, {W8_OFF}, v{WA8}
        ds_read_b64 v[{PK[0]}:{PK[0]+1}], v{WA8}
        ds_read_b64 v[{PK[1]}:{PK[1]+1}], v{WA8} offset:512
        """)
        for i in epilogue(self.ACP + 16, V_S, V_C, self.RS + 2, V_TMP, S_PO + 2, cfg): a(i)
        self.pad()
        a(f"""
        s_waitcnt lgkmcnt(0)
        ds_read_b128 v[{XF}:{XF+3}], v{XA0}
        ds_read_b128 v[{XF+4}:{XF+7}], v{XA1}
        """)
        for i in epilogue(V_ACA, V_S, V_C, V_R + 1, V_TMP, S_OPREV, cfg): a(i)
        self.pad()
        a(f"""
        s_lshl_b32 s{S_T}, s{S_TILE}, 6
        v_add_u32 v16, s{S_T}, v{V_RB}
        ds_read_b32 v{R0}, v16
        s_lshl_b32 s{S_T}, s{S_FT}, 6
        v_add_u32 v16, s{S_T}, v{V_RB}
        ds_read_b32 v{R1}, v16
        """)
        for r in range(16):
            a(f"v_mov_b32 v{ACC8+r}, 0")
            a(f"v_mov_b32 v{V_ACA+r}, 0")
        self.pad()
        for i in dequant2s(WF[0], PK[0], PK[0] + 1): a(i)
        a(f"s_mov_b32 s{S_IDX}, 0")
        self.pad()
        a("L_n8:")
        for h in range(2):
            cur, nxt = WF[h], WF[1 - h]
            xc, xn = XF + 8 * h, XF + 8 * (1 - h)
            dq = dequant2s(nxt, PK[1 - h], PK[1 - h] + 1)
            rds = [f"ds_read_b128 v[{xn}:{xn+3}], v{XA0} offset:{512*(h+1)}",
                   f"ds_read_b64 v[{PK[h]}:{PK[h]+1}], v{WA8} offset:{1024 + 512*h}",
                   f"ds_read_b128 v[{xn+4}:{xn+7}], v{XA1} offset:{512*(h+1)}"]
            F = V_W + 8 * h
            seq = [(ACC8, cur, xc), (ACC8 + 4, cur + 4, xc), (ACC8 + 8, cur, xc + 4), (ACC8 + 12, cur + 4, xc + 4),
                   (V_ACA, F, xc), (V_ACA + 4, F + 4, xc), (V_ACB, F, xc + 4), (V_ACB + 4, F + 4, xc + 4)]
            tail = [f"v_add_u32 v{XA0}, 1024, v{XA0}", f"v_add_u32 v{XA1}, 1024, v{XA1}", f"v_add_u32 v{WA8}, 1024, v{WA8}"] if h else []
            gaps = [[rds[0]] + dq[0:2], [rds[1]] + dq[2:4], [rds[2]] + dq[4:6], dq[6:8] + [f"s_set_gpr_idx_on s{S_IDX}, gpr_idx(SRC0)"],
                    dq[8:11], dq[11:14], dq[14:16] + tail[:1], ["s_set_gpr_idx_off"] + tail[1:]]
            a("s_waitcnt lgkmcnt(0)")
            for k, (d, aa, bb) in enumerate(seq):
                a(mfma(d, aa, bb))
                for i in gaps[k]: a(i)
        S8, C8 = WF[0], WF[1]
        a(f"""
        s_add_u32 s{S_IDX}, s{S_IDX}, 16
        s_cmp_lt_u32 s{S_IDX}, 144
        s_cbranch_scc1 L_n8
        """)
        self.pad()
        a(f"""
        v_lshlrev_b32 v17, 4, v3
        v_add_u32 v17, {SC_OFF + 512}, v17
        s_waitcnt lgkmcnt(0)
        ds_read_b128 v[{XF}:{XF+3}], v17
        ds_read_b128 v[{XF+4}:{XF+7}], v17 offset:1024
        s_lshl_b32 s{S_T+1}, s3, 6
        s_sub_u32 s{S_O8}, s{S_OCUR}, s{S_T+1}
        s_add_u32 s{S_O8}, s{S_O8}, 512
        s_sub_u32 s{S_O8+1}, s{S_F}, s{S_T+1}
        s_add_u32 s{S_O8+1}, s{S_O8+1}, 512
        """)
        for i in epilogue(V_ACB, V_S, V_C, R1, V_TMP, S_F, cfg): a(i)
        self.pad()
        a("s_waitcnt lgkmcnt(0)")
        for i in unpack_consts(XF, XF + 4, S8, C8): a(i)
        self.pad()
        XR = V_G + 8
        a(f"""
        s_mov_b32 s{S_TPREV}, s{S_TILE}
        s_mov_b32 s{S_OPREV}, s{S_OCUR}
        s_add_u32 s{S_TILE}, s{S_FT}, 1
        s_and_b32 s{S_TILE}, s{S_TILE}, 7
        s_mov_b32 s{S_TRIP}, 1
        """)
        for i in self.tile_setup(S_TILE, V_XA + 1, S_OCUR): a(i)
        for i in epilogue(ACC8 + 8, S8, C8, R1, V_TMP, S_O8 + 1, cfg): a(i)
        self.pad()
        for p in range(3):
            r = XR + 4 * ((18 + p) % 4)
            a(f"ds_read_b128 v[{r}:{r+3}], v{V_XA+1} offset:{512*p}")
        for i in epilogue(ACC8, S8, C8, R0, V_TMP, S_O8, cfg): a(i)
        self.stamp(7)
        a("s_branch L_jobB")

def build(cfg, fname):
    g = Gen(cfg)
    g.prologue(); g.phase1(); g.jobs(); g.n8_job(); g.finish()
    lines = k6.resolve([l for l in g.a.lines if l.strip()], cfg)
    i = next(i for i, l in enumerate(lines) if l.strip() == "s_mov_b64 exec, 0")
    lines.insert(i, f"    s_mov_b32 s{S_IDX}, 0")
    open(fname, "w").write(wrap("\n".join(lines) + "\n", 256, 512, LDS_BYTES, 256, 256))

if __name__ == "__main__":
    cfg = Cfg()
    for kv in sys.argv[2:]:
        k, v = kv.split("=")
        setattr(cfg, k, int(v) if v.lstrip("-").isdigit() else v.replace("+", " "))
    build(cfg, sys.argv[1])
```

```python
import sys, re
from common import *
from k1 import isize
import k6
from k6 import (MT, RG, R_OFF, W8_OFF, SC_OFF, ZE_OFF, LDS_BYTES, ROWB, QROW, S_X, S_W, S_SC, S_ZE, S_O, S_TRIP, S_TILE,
                S_OPREV, S_OCUR, S_TP, S_IT, S_TPREV, S_O8, S_T, S_MASK, S_OB, S_LW, S_NB, V_DV, V_WA, V_ST, V_C43, V_SH0,
                V_SH1, V_K128, V_LB, V_XA, V_RB, V_ACA, V_ACB, V_S, V_C, V_TMP, V_R, V_G, V_W, mfma, dequant2,
                unpack_consts, epilogue)

class Cfg:
    xcd_m = 4
    stamps = 0
    st_flags = "sc1"
    ahead = 3
    pre = 1
    warm = 3
    rbar = 3
    prio8 = 0
    fine = 0
    sync0 = 1
    rot = 1
    n8trip = 1
    r2 = 4
    early = 1
    cpf = 0
    small = 0
    defer = 0
    lastplain = 0
    pA = 0
    pB1 = 0
    init = 2
    ndry = 4

S_GX, S_GW = 4, 7
S_PT = 10
S_PO = 52

class Gen(k6.Gen):
    def block_loads(self, b):
        g, r = b // 3, b % 3
        if self.cfg.rot == 2: g, r = (0 if b < 9 - self.cfg.r2 else 1), b
        out = []
        for h in range(2):
            ks = 2 * b + h
            F = V_W + 8 * ks
            out.append(([f"s_add_u32 s{S_T+1}, s{S_GW+g}, {(8*r + 4*h)*QROW}",
                         f"buffer_load_dwordx2 v[{F+6}:{F+7}], v{V_WA}, s[{S_W}:{S_W+3}], s{S_T+1} offen"], ("W", ks)))
        for rg in range(2):
            out.append(([f"s_add_u32 m0, s{S_LW}, {rg*RG + b*1024}",
                         f"s_add_u32 s{S_T}, s{S_GX+g}, {rg*8*1152 + r*128}",
                         f"buffer_load_dwordx4 v{V_DV+rg}, s[{S_X}:{S_X+3}], s{S_T} offen lds"], ("D", b)))
        return out

    def prologue(self):
        a, cfg = self.a, self.cfg
        xm = cfg.xcd_m; xn = 32 // xm; mg = 16 // xm
        if cfg.stamps:
            a("s_memrealtime s[96:97]")
        self.stamp(0)
        a(f"""
        s_cmp_ge_u32 s2, 256
        s_cbranch_scc1 L_done
        s_load_dwordx2 s[{S_X}:{S_X+1}], s[0:1], 0
        s_load_dwordx2 s[{S_W}:{S_W+1}], s[0:1], 8
        s_load_dwordx2 s[{S_SC}:{S_SC+1}], s[0:1], 16
        s_load_dwordx2 s[{S_ZE}:{S_ZE+1}], s[0:1], 24
        s_load_dwordx2 s[{S_O}:{S_O+1}], s[0:1], 40
        v_lshrrev_b32 v1, 6, v0
        v_and_b32 v0, 63, v0
        s_and_b32 s14, s2, 7
        v_readfirstlane_b32 s3, v1
        {"@@EARLY@@" if cfg.early else ""}
        s_lshr_b32 s15, s2, 3
        s_and_b32 s16, s14, {mg-1}
        s_lshr_b32 s17, s14, {mg.bit_length()-1}
        s_mul_i32 s16, s16, {xm}
        s_mul_i32 s17, s17, {xn}
        s_and_b32 s18, s15, {xm-1}
        s_lshr_b32 s19, s15, {xm.bit_length()-1}
        s_add_u32 s16, s16, s18
        s_add_u32 s17, s17, s19
        s_mov_b32 s{S_X+2}, {X_BYTES}
        s_mov_b32 s{S_X+3}, 0x00020000
        s_mov_b32 s{S_W+2}, {QW_BYTES}
        s_mov_b32 s{S_W+3}, 0x00020000
        v_and_b32 v2, 15, v0
        v_lshrrev_b32 v3, 4, v0
        v_bfe_u32 v1, v0, 2, 3
        v_mul_u32_u24 v{V_DV}, 1152, v1
        v_lshrrev_b32 v1, 5, v0
        v_lshl_add_u32 v{V_DV}, v1, 6, v{V_DV}
        v_bfe_i32 v1, v0, 4, 1
        v_xor_b32 v1, v1, v0
        v_and_b32 v1, 3, v1
        v_lshl_add_u32 v{V_DV}, v1, 4, v{V_DV}
        v_xor_b32 v{V_DV+1}, 32, v{V_DV}
        v_mul_u32_u24 v{V_WA}, {QROW}, v3
        v_lshl_add_u32 v{V_WA}, v2, 3, v{V_WA}
        s_mul_i32 s18, s16, {128*1152}
        s_mul_i32 s{S_T}, s3, {16*1152}
        s_add_u32 s18, s18, s{S_T}
        s_mul_i32 s19, s17, {288*4}
        s_lshl_b32 s{S_T}, s3, 7
        s_add_u32 s15, s19, s{S_T}
        s_mul_i32 s{S_LW}, s3, {MT}
        s_add_u32 s13, s16, s17
        s_mul_i32 s{S_T}, s13, 43
        s_lshr_b32 s{S_T}, s{S_T}, 7
        s_mul_i32 s{S_T}, s{S_T}, 3
        s_sub_u32 s13, s13, s{S_T}
        {"s_mov_b32 s13, 0" if not cfg.rot else ""}
        """)
        if cfg.rot == 2:
            a(f"s_add_u32 s13, s16, s17\ns_and_b32 s13, s13, 1\ns_mul_i32 s13, s13, {cfg.r2}")
        def grp(g):
            if cfg.rot == 2:
                if g == 2: return
                if g == 0: a(f"s_mov_b32 s{S_T+2}, s13")
                else: a(f"s_cmp_lg_u32 s13, 0\ns_cselect_b32 s{S_T+2}, {cfg.r2 - 9}, 0")
                a(f"""
                s_mul_i32 s{S_GX+g}, s{S_T+2}, 128
                s_add_u32 s{S_GX+g}, s{S_GX+g}, s18
                s_mul_i32 s{S_GW+g}, s{S_T+2}, {8*QROW}
                s_add_u32 s{S_GW+g}, s{S_GW+g}, s15
                """)
                return
            if g: a(f"s_add_u32 s{S_T+2}, s{S_T+2}, 1\ns_cmp_eq_u32 s{S_T+2}, 3\ns_cselect_b32 s{S_T+2}, 0, s{S_T+2}")
            else: a(f"s_mov_b32 s{S_T+2}, s13")
            a(f"""
            s_mul_i32 s{S_GX+g}, s{S_T+2}, 384
            s_add_u32 s{S_GX+g}, s{S_GX+g}, s18
            s_mul_i32 s{S_GW+g}, s{S_T+2}, {24*QROW}
            s_add_u32 s{S_GW+g}, s{S_GW+g}, s15
            """)
        grp(0)
        a("s_waitcnt lgkmcnt(0)")
        self.stamp(1)
        if cfg.early and cfg.ndry == 4:
            bl = self.block_loads(0)
            a("s_cmp_ge_u32 s3, 4\ns_cbranch_scc1 L_b0")
            for g in bl[2:]: self.emit_group(g)
            for rg in range(2):
                a(f"s_add_u32 m0, s{S_LW}, {4*MT + rg*RG}")
                a(f"s_add_u32 s{S_T}, s{S_GX}, {(64 + rg*8)*1152}")
                a(f"buffer_load_dwordx4 v{V_DV+rg}, s[{S_X}:{S_X+3}], s{S_T} offen lds")
                self.q.append(("D", 0))
            a("L_b0:")
            for g in bl[:2]: self.emit_group(g)
        else:
            for b in range(cfg.pre):
                bl = self.block_loads(b)
                for g in (bl if getattr(cfg, "wfirst", 0) else bl[2:] + bl[:2]): self.emit_group(g)
        a(f"""
        s_mov_b32 s{S_O+2}, {OUT_BYTES}
        s_mov_b32 s{S_O+3}, 0x00020000
        v_mul_u32_u24 v{V_ST}, {ROWB}, v2
        v_lshl_add_u32 v{V_ST}, v3, 4, v{V_ST}
        v_lshrrev_b32 v1, 3, v2
        v_mul_u32_u24 v{V_LB}, {RG}, v1
        v_and_b32 v1, 7, v2
        v_lshl_add_u32 v{V_LB}, v1, 6, v{V_LB}
        v_lshrrev_b32 v1, 2, v2
        v_sub_u32 v1, 0, v1
        v_xor_b32 v1, v1, v3
        v_and_b32 v1, 3, v1
        v_lshl_add_u32 v{V_LB}, v1, 4, v{V_LB}
        v_mov_b32 v{V_XA}, v{V_LB}
        v_mov_b32 v{V_XA+1}, v{V_LB}
        v_lshlrev_b32 v{V_RB}, 2, v2
        v_add_u32 v{V_RB}, {R_OFF}, v{V_RB}
        v_mov_b32 v16, v{V_RB}
        v_mov_b32 v17, v{V_RB}
        """)
        if cfg.cpf:
            a(f"""
            s_getpc_b64 s[{S_T}:{S_T+1}]
            v_lshlrev_b32 v56, 7, v0
            s_lshl_b32 s{S_T+3}, s3, 10
            v_cmp_gt_u32 vcc, {cfg.cpf}, v0
            s_mul_i32 s{S_T+3}, s3, {cfg.cpf*128}
            v_add_u32 v56, s{S_T+3}, v56
            v_mov_b32 v57, s{S_T+1}
            s_mov_b64 exec, vcc
            v_add_co_u32 v56, vcc, s{S_T}, v56
            s_nop 1
            v_addc_co_u32 v57, vcc, 0, v57, vcc
            global_load_dword v56, v[56:57], off
            s_mov_b64 exec, -1
            """)
            self.q.append(("C", 0))
        if cfg.sync0: a("s_barrier")
        a("@@WARM@@")
        self.stamp(2)
        for b in range(cfg.pre, cfg.init):
            bl = self.block_loads(b)
            for g in bl[2:] + bl[:2]: self.emit_group(g)
        a(f"s_mov_b32 s{S_T+2}, s13")
        grp(1); grp(2)
        a(f"""
        s_mov_b32 s{S_SC+2}, {SZ_BYTES}
        s_mov_b32 s{S_SC+3}, 0x00020000
        s_mov_b32 s{S_ZE+2}, {SZ_BYTES}
        s_mov_b32 s{S_ZE+3}, 0x00020000
        s_mul_i32 s{S_NB}, s17, {288*2}
        s_mov_b32 s{S_MASK}, 0x000f000f
        s_mul_i32 s{S_OB}, s16, {128*ROWB}
        s_add_u32 s{S_OB}, s{S_OB}, s{S_NB}
        s_and_b32 s14, s3, 3
        s_mul_i32 s{S_O8}, s14, {32*ROWB}
        s_add_u32 s{S_O8}, s{S_O8}, s{S_OB}
        s_add_u32 s{S_O8}, s{S_O8}, 512
        s_add_u32 s{S_O8+1}, s{S_O8}, {16*ROWB}
        s_lshl_b32 s{S_T}, s3, 6
        s_add_u32 s{S_OB}, s{S_OB}, s{S_T}
        v_mov_b32 v{V_C43}, 0x43004300
        v_mov_b32 v{V_SH0}, 0x00040000
        v_mov_b32 v{V_SH1}, 0x000c0008
        v_mov_b32 v{V_K128}, 0x43000000
        v_lshrrev_b32 v1, 3, v0
        v_mul_u32_u24 v18, {QROW}, v1
        v_and_b32 v1, 7, v0
        v_lshl_add_u32 v18, v1, 4, v18
        v_lshlrev_b32 v19, 4, v0
        s_mov_b32 s{S_TRIP}, 0
        s_lshr_b32 s55, s3, 2
        """)
        self.PA = [V_XA, V_XA + 1, 16, 17]
        for u in range(4):
            st = S_PT + u if u < 3 else S_TPREV
            so = S_PO + u if u < 3 else S_OPREV
            a(f"s_add_u32 s{st}, s3, {u}\ns_and_b32 s{st}, s{st}, 7")
            for i in self.tile_setup(st, self.PA[u], so): a(i)

    def phase1(self):
        a, cfg = self.a, self.cfg
        AH = cfg.ahead
        ONE, RS = V_G, V_G + 4
        ACP = V_G + 24
        self.ACP, self.RS = ACP, RS
        ACC = [ACP, ACP + 8, ACP + 16, V_ACB]
        ring = [V_S, V_S + 4, V_C, V_C + 4, V_ACA, V_ACA + 4]
        for i in range(4): a(f"v_mov_b32 v{ONE+i}, 0x3f803f80")
        if cfg.pB1:
            a(f"s_cmp_lt_u32 s3, 4\ns_cbranch_scc1 L_pb\ns_setprio {cfg.pB1}\nL_pb:")
        self.wait_vm(("D", 0))
        a("s_barrier")
        self.stamp(3)
        NR, PF = 6, 4
        def rd(f):
            ks, u = f // 4, f % 4
            r = ring[f % NR]
            return f"ds_read_b128 v[{r}:{r+3}], v{self.PA[u]} offset:{ks*512}"
        for f in range(PF): a(rd(f))
        self.wait_vm(("W", 1))
        for i in dequant2(V_W): a(i)
        dq = dequant2(V_W + 8)
        for i in dq[:8]: a(i)
        carry = dq[8:]
        g1 = [f"s_lshl_b32 s{S_T}, s3, 10", f"s_add_u32 m0, s{S_T}, {W8_OFF}",
              f"s_mul_i32 s{S_T}, s13, 3", f"s_add_u32 s{S_T}, s{S_T}, s3", f"s_cmp_ge_u32 s{S_T}, 9",
              f"s_cselect_b32 s{S_T+1}, 9, 0", f"s_sub_u32 s{S_T}, s{S_T}, s{S_T+1}", f"s_mul_i32 s{S_T}, s{S_T}, {8*QROW}",
              f"s_add_u32 s{S_T}, s{S_T}, s19", f"s_add_u32 s{S_T}, s{S_T}, 1024",
              f"buffer_load_dwordx4 v18, s[{S_W}:{S_W+3}], s{S_T} offen lds"]
        self.nissued = 4 * cfg.init
        for ks in range(18):
            j, half = ks >> 1, ks & 1
            if half == 1 and j + 1 < 9:
                self.wait_vm(("D", j + 1))
                a("s_barrier")
                if cfg.fine and j in (0, 2, 5): self.stamp({0: 8, 2: 9, 5: 10}[j])
            if getattr(cfg, "mid", None) is not None: a(f"@@STEP{ks}")
            nxt = dequant2(V_W + 8 * (ks + 2)) if ks + 2 < 18 else []
            pool = carry + ([("W", ks + 2)] if nxt else []) + nxt[:8]
            carry = nxt[8:]
            loads = []
            want = min(36, 4 * (j + AH) + 2 * (half + 1))
            while self.nissued < want and len(loads) < 4:
                b, r = self.nissued // 4, self.nissued % 4
                loads.append(self.block_loads(b)[(2, 0, 3, 1)[r]]); self.nissued += 1
            if j + AH == 9 and half == 0:
                assert not loads
                loads = [(g1, ("X", 0))]
                a(f"""
                s_cmp_gt_u32 s3, 2
                s_cbranch_scc1 L_x3
                s_cmp_eq_u32 s3, 1
                s_cbranch_scc1 L_x1
                s_cmp_eq_u32 s3, 2
                s_cbranch_scc1 L_x2
                s_mov_b32 m0, {W8_OFF + 8192}
                s_add_u32 s{S_T}, s{S_GW+2}, {16*QROW + 1024}
                buffer_load_dwordx4 v18, s[{S_W}:{S_W+3}], s{S_T} offen lds
                s_branch L_x3
                L_x1:
                s_mov_b32 m0, {SC_OFF}
                s_nop 0
                buffer_load_dwordx4 v19, s[{S_SC}:{S_SC+3}], s{S_NB} offen lds
                s_branch L_x3
                L_x2:
                s_mov_b32 m0, {ZE_OFF}
                s_nop 0
                buffer_load_dwordx4 v19, s[{S_ZE}:{S_ZE+3}], s{S_NB} offen lds
                L_x3:
                """)
            F = V_W + 8 * ks
            fst = ks == 0
            slots = []
            for u in range(4):
                f = 4 * ks + u
                x = ring[f % NR]
                slots.append(([f"s_waitcnt lgkmcnt({min(PF - 1, 71 - f)})", mfma(ACC[u], F, x, fst)], [rd(f + PF)] if f + PF < 72 else []))
                slots.append(([mfma(ACC[u] + 4, F + 4, x, fst)], []))
                if u == 0: slots.append(([mfma(RS, ONE, x, fst)], []))
            nl = len(loads)
            total = sum(1 for x in pool if isinstance(x, str)) + nl + sum(len(s[1]) for s in slots)
            done = 0
            lpos = {2: 0, 6: 1} if nl <= 2 else {1: 0, 2: 1, 4: 2, 6: 3}
            def pop():
                x = pool.pop(0)
                if isinstance(x, tuple):
                    self.wait_vm(x); x = pool.pop(0)
                a(x)
            for i, (pre, forced) in enumerate(slots):
                for x in pre: a(x)
                for x in forced: a(x); done += 1
                if i in lpos and lpos[i] < nl:
                    self.emit_group(loads[lpos[i]]); done += 1
                target = total * (i + 1) / len(slots)
                while pool and done + 0.5 <= target:
                    pop(); done += 1
                self.pad()
            while pool: pop()
        self.stamp(4)

    def jobs(self):
        a, cfg = self.a, self.cfg
        self.late = True
        XR = V_G + 8
        RAW = V_G + 48
        a(f"""
        s_add_u32 s{S_TILE}, s{S_TPREV}, 1
        s_and_b32 s{S_TILE}, s{S_TILE}, 7
        """)
        for i in self.tile_setup(S_TILE, V_XA, S_OCUR): a(i)
        if cfg.pA or cfg.pB1:
            a(f"s_setprio 0\ns_cmp_ge_u32 s3, 4\ns_cbranch_scc1 L_pa\ns_setprio {cfg.pA}\nL_pa:")
        a(f"""
        s_lshl_b32 s{S_T}, s3, 6
        v_add_u32 v16, s{S_T}, v{V_RB}
        ds_write_b32 v16, v{self.RS}
        """)
        if not cfg.small: a("L_late:")
        a("L_pref:")
        for p in range(3):
            a(f"ds_read_b128 v[{XR+4*p}:{XR+4*p+3}], v{V_XA} offset:{512*p}")
        a("L_trip:")
        self.pad()
        RB = cfg.rbar
        for jb in range(2):
            acc, prev = (V_ACA, V_ACB) if jb == 0 else (V_ACB, V_ACA)
            va, vn = V_XA + jb, V_XA + 1 - jb
            fill = epilogue(prev, V_S, V_C, V_R, V_TMP, S_OPREV, cfg)
            for ks in range(18):
                p = 18 * jb + ks
                q = ks + 3
                if jb == 0 and ks == RB:
                    a(f"""
                    s_cmp_lg_u32 s{S_TRIP}, 0
                    s_cbranch_scc1 L_nr
                    s_lshl_b32 s{S_T}, s3, 6
                    s_add_u32 s{S_T}, s{S_T}, {SC_OFF}
                    v_lshlrev_b32 v17, 4, v3
                    v_add_u32 v17, s{S_T}, v17
                    s_waitcnt vmcnt(0) lgkmcnt(0)
                    s_barrier
                    ds_read_b128 v[{RAW}:{RAW+3}], v17
                    ds_read_b128 v[{V_G}:{V_G+3}], v17 offset:1024
                    s_lshl_b32 s{S_T}, s{S_PT+1}, 6
                    v_add_u32 v16, s{S_T}, v{V_RB}
                    ds_read_b32 v{self.RS+1}, v16
                    s_lshl_b32 s{S_T}, s{S_PT+2}, 6
                    v_add_u32 v16, s{S_T}, v{V_RB}
                    ds_read_b32 v{self.RS+2}, v16
                    s_waitcnt lgkmcnt(2)
                    """)
                    for i in unpack_consts(RAW, V_G, V_S, V_C): a(i)
                    self.pad()
                    for i in epilogue(self.ACP, V_S, V_C, self.RS, V_TMP, S_PO, cfg): a(i)
                    a("s_waitcnt lgkmcnt(0)")
                    self.stamp(5)
                    a("L_nr:")
                if ks == RB:
                    a(f"s_lshl_b32 s{S_T}, s{S_TPREV}, 6")
                    a(f"v_add_u32 v16, s{S_T}, v{V_RB}")
                    a(f"ds_read_b32 v{V_R}, v16")
                if ks == 12:
                    a(f"s_add_u32 s{S_T+3}, s{S_TILE}, 1\ns_and_b32 s{S_T+3}, s{S_T+3}, 7\ns_mul_i32 s{S_T+2}, s{S_T+3}, {MT}")
                    a(f"v_add_u32 v{vn}, s{S_T+2}, v{V_LB}")
                r = XR + 4 * ((p + 3) % 4)
                a(f"s_waitcnt lgkmcnt({3 if RB <= ks < RB + 3 else 2})")
                x = XR + 4 * (p % 4)
                a(mfma(acc, V_W + 8 * ks, x, first=(ks == 0)))
                a(f"ds_read_b128 v[{r}:{r+3}], v{va if q < 18 else vn} offset:{512*(q % 18)}")
                if ks >= RB + 4 and fill: a(fill.pop(0))
                a(mfma(acc + 4, V_W + 8 * ks + 4, x, first=(ks == 0)))
                if ks >= RB + 4 and fill: a(fill.pop(0))
                self.pad()
            while fill: a(fill.pop(0))
            a(f"""
            s_mov_b32 s{S_TPREV}, s{S_TILE}
            s_mov_b32 s{S_OPREV}, s{S_OCUR}
            s_mov_b32 s{S_TILE}, s{S_T+3}
            s_mul_i32 s{S_OCUR}, s{S_TILE}, {16*ROWB}
            s_add_u32 s{S_OCUR}, s{S_OCUR}, s{S_OB}
            s_cmp_lg_u32 s{S_TRIP}, {"s55" if cfg.defer else "0"}
            s_cbranch_scc1 L_np{jb}
            """)
            for i in epilogue(self.ACP + 8 * (jb + 1), V_S, V_C, self.RS + jb + 1, V_TMP, S_PO + jb + 1, cfg): a(i)
            if jb == 0: self.stamp(6)
            a(f"L_np{jb}:")
            self.pad()
        a(f"""
        s_add_u32 s{S_TRIP}, s{S_TRIP}, 1
        s_lshl_b32 s{S_T}, s3, 6
        s_and_b32 s{S_T}, s{S_T}, 0x100
        s_add_u32 s{S_T}, s{S_T}, s{S_TRIP}
        s_cmp_eq_u32 s{S_T}, 1
        s_cbranch_scc1 L_n8job
        s_cmp_lt_u32 s{S_TRIP}, 2
        s_cbranch_scc1 L_trip
        """)
        if cfg.small: a("L_late:")
        self.stamp(8)
        a(f"""
        s_lshl_b32 s{S_T}, s{S_TPREV}, 6
        v_add_u32 v16, s{S_T}, v{V_RB}
        ds_read_b32 v{V_R}, v16
        s_waitcnt lgkmcnt(0)
        """)
        for i in epilogue(V_ACB, V_S, V_C, V_R, V_TMP, S_OPREV, cfg):
            a(i.replace(" " + cfg.st_flags, "") if cfg.lastplain else i)
        self.stamp(9)
        a("s_branch L_end")
        self.pad()

def build(cfg, fname):
    g = Gen(cfg)
    g.prologue(); g.phase1(); g.jobs(); g.n8_job(); g.finish()
    lines = [l for l in g.a.lines if l.strip()]
    if cfg.early:
        class C2: warm = 3 if cfg.ndry == 4 else 2
        lines = k6.resolve(lines, C2)
        i0 = next(i for i, l in enumerate(lines) if l.strip() == "s_mov_b64 exec, 0")
        i1 = next(i for i, l in enumerate(lines) if l.strip() == "L_wret:")
        disp = lines[i0 + 1:i1]
        hopd, dryd = (disp[:8], disp[8:]) if cfg.ndry == 4 else ([], disp)
        il = next(i for i, l in enumerate(lines) if l.strip() == "L_seg0:")
        for i in range(il, len(lines)):
            lines[i] = lines[i].replace("L_wret", "L_eret")
        mid = ([lines[i0]] + hopd + lines[i1:i1 + 2]) if cfg.warm & 1 else ["L_wret:"]
        lines[i0:i1 + 2] = mid
        ie = next(i for i, l in enumerate(lines) if l.strip() == "@@EARLY@@")
        init = [f"    v_mov_b32 v{r}, 0" for r in (13, 14, 15, 16, 17)]
        lines[ie:ie + 1] = init + ["    s_mov_b64 exec, 0"] + dryd + ["L_eret:", "    s_mov_b64 exec, -1"]
    else:
        lines = k6.resolve(lines, cfg)
    open(fname, "w").write(wrap("\n".join(lines) + "\n", 256, 512, LDS_BYTES, 256, 256))

if __name__ == "__main__":
    cfg = Cfg()
    for kv in sys.argv[2:]:
        k, v = kv.split("=")
        setattr(cfg, k, int(v) if v.lstrip("-").isdigit() else v.replace("+", " "))
    build(cfg, sys.argv[1])
```

```python
import sys, re
from common import *
import k6, k8
from k8 import *

class Cfg(k8.Cfg):
    warm = 2
    cpf = 9
    small = 1
    early = 0
    pA = 1
    fewbar = 0
    endry = 1
    tch = 0
    tb0 = 2
    pk = 0
    w2 = 0
    wfirst = 0
    fs = 2

def epi_block(acc, S, C, R, tmp, s_off, cfg):
    if not cfg.pk: return epilogue(acc, S, C, R, tmp, s_off, cfg)
    rb, o = R & ~1, R & 1
    out = [f"v_pk_fma_f32 v[{acc+r}:{acc+r+1}], v[{C+r}:{C+r+1}], v[{rb}:{rb+1}], v[{acc+r}:{acc+r+1}] op_sel:[0,{o},0] op_sel_hi:[1,{o},1] neg_lo:[1,0,0] neg_hi:[1,0,0]" for r in range(0, 8, 2)]
    out += [f"v_pk_mul_f32 v[{acc+r}:{acc+r+1}], v[{S+r}:{S+r+1}], v[{acc+r}:{acc+r+1}]" for r in range(0, 8, 2)]
    return out + epilogue(acc, S, C, R, tmp, s_off, cfg)[16:]

class Gen(k8.Gen):
    def touch(self, tag):
        a, cfg = self.a, self.cfg
        assert cfg.xcd_m == 4 and not cfg.rot
        a(f"""
        s_and_b32 s{S_T+2}, s3, 6
        s_add_u32 s{S_T+2}, s{S_T+2}, {cfg.tb0}
        s_bitcmp1_b32 s3, 0
        s_cbranch_scc1 L_tw{tag}
        v_mul_u32_u24 v58, 1152, v2
        v_lshl_add_u32 v58, v3, 7, v58
        s_and_b32 s{S_T}, s17, 7
        s_mul_i32 s{S_T}, s{S_T}, {16*1152}
        s_mul_i32 s{S_T+1}, s16, {128*1152}
        s_add_u32 s{S_T}, s{S_T}, s{S_T+1}
        s_lshl_b32 s{S_T+2}, s{S_T+2}, 7
        s_add_u32 s{S_T}, s{S_T}, s{S_T+2}
        s_mov_b64 exec, 0xffffffff
        buffer_load_dword v58, v58, s[{S_X}:{S_X+3}], s{S_T} offen
        s_branch L_tx{tag}
        L_tw{tag}:
        v_mul_u32_u24 v58, 0x1c72, v0
        v_lshrrev_b32 v58, 16, v58
        v_mul_u32_u24 v59, 9, v58
        v_sub_u32 v59, v0, v59
        v_lshrrev_b32 v1, 1, v58
        v_and_b32 v58, 1, v58
        v_lshl_add_u32 v58, v1, 3, v58
        v_mul_u32_u24 v58, {QROW}, v58
        v_lshl_add_u32 v58, v59, 7, v58
        s_and_b32 s{S_T}, s16, 3
        s_lshl_b32 s{S_T}, s{S_T}, 1
        s_lshl_b32 s{S_T+2}, s{S_T+2}, 3
        s_add_u32 s{S_T}, s{S_T}, s{S_T+2}
        s_mul_i32 s{S_T}, s{S_T}, {QROW}
        s_add_u32 s{S_T}, s{S_T}, s19
        s_mov_b32 exec_lo, -1
        s_mov_b32 exec_hi, 15
        buffer_load_dword v58, v58, s[{S_W}:{S_W+3}], s{S_T} offen
        L_tx{tag}:
        s_mov_b64 exec, -1
        """)

    def phase1(self):
        a, cfg = self.a, self.cfg
        AH = cfg.ahead
        ONE, RS = V_G, V_G + 4
        ACP = V_G + 24
        self.ACP, self.RS = ACP, RS
        ACC = [ACP, ACP + 8, ACP + 16, V_ACB]
        ring = [V_G + 8, V_G + 12, V_G + 16, V_G + 20, V_ACA, V_ACA + 4]
        EX = [V_G + 48, V_TMP]
        if cfg.tch == 1:
            self.touch("a"); self.q.append(("T", 0))
        if cfg.tch == 2:
            a("s_cmp_ge_u32 s3, 4\ns_cbranch_scc1 L_nt0"); self.touch("a"); a("L_nt0:")
        for i in range(4): a(f"v_mov_b32 v{ONE+i}, 0x3f803f80")
        if cfg.wfirst:
            self.wait_vm(("W", 1))
            for i in dequant2(V_W): a(i)
            for i in dequant2(V_W + 8)[:8]: a(i)
        self.wait_vm(("D", 0))
        a("s_barrier")
        self.stamp(3)
        if cfg.tch == 2:
            a("s_cmp_lt_u32 s3, 4\ns_cbranch_scc1 L_nt1"); self.touch("b"); a("L_nt1:")
        NR, PF = 6, 4
        fl = []
        def rd(f):
            ks, u = f // 4, f % 4
            r = ring[f % NR]
            a(f"ds_read_b128 v[{r}:{r+3}], v{self.PA[u]} offset:{ks*512}"); fl.append(f)
        def lds(instr, tag):
            a(instr); fl.append(tag)
        def need(x):
            if x not in fl: return
            idx = fl.index(x)
            a(f"s_waitcnt lgkmcnt({len(fl) - 1 - idx})")
            del fl[:idx + 1]
        for f in range(PF): rd(f)
        dq = dequant2(V_W + 8)
        if not cfg.wfirst:
            self.wait_vm(("W", 1))
            for i in dequant2(V_W): a(i)
            for i in dq[:8]: a(i)
        carry = dq[8:]
        g1 = [f"s_lshl_b32 s{S_T}, s3, 10", f"s_add_u32 m0, s{S_T}, {W8_OFF}",
              f"s_mul_i32 s{S_T}, s13, {1 if cfg.rot == 2 else 3}", f"s_add_u32 s{S_T}, s{S_T}, s3", f"s_cmp_ge_u32 s{S_T}, 9",
              f"s_cselect_b32 s{S_T+1}, 9, 0", f"s_sub_u32 s{S_T}, s{S_T}, s{S_T+1}", f"s_mul_i32 s{S_T}, s{S_T}, {8*QROW}",
              f"s_add_u32 s{S_T}, s{S_T}, s19", f"s_add_u32 s{S_T}, s{S_T}, 1024",
              f"buffer_load_dwordx4 v18, s[{S_W}:{S_W+3}], s{S_T} offen lds"]
        self.nissued = 4 * cfg.init
        plan = {j: j + 1 for j in range(8)}
        if cfg.fewbar:
            plan = {0: 1, 1: 2, 2: 3, 3: 5, 5: 7, 7: 8}
        for ks in range(18):
            j, half = ks >> 1, ks & 1
            if half == 1 and j in plan:
                if j == 7: a("s_waitcnt vmcnt(0)")
                else: self.wait_vm(("D", plan[j]))
                a("s_barrier")
                if cfg.fine and j < 6: self.stamp(5 + j)
            if ks == 17:
                need("rw")
                a("s_barrier")
            nxt = dequant2(V_W + 8 * (ks + 2)) if ks + 2 < 18 else []
            pool = carry + ([("W", ks + 2)] if nxt else []) + nxt[:8]
            carry = nxt[8:]
            loads = []
            want = min(36, 4 * (j + AH) + 2 * (half + 1))
            while self.nissued < want and len(loads) < 4:
                b, r = self.nissued // 4, self.nissued % 4
                loads.append(self.block_loads(b)[(2, 0, 3, 1)[r]]); self.nissued += 1
            if j + AH == 9 and half == 0:
                assert not loads
                loads = [(g1, ("X", 0))]
                a(f"""
                s_cmp_gt_u32 s3, 2
                s_cbranch_scc1 L_x3
                s_cmp_eq_u32 s3, 1
                s_cbranch_scc1 L_x1
                s_cmp_eq_u32 s3, 2
                s_cbranch_scc1 L_x2
                s_mov_b32 m0, {W8_OFF + 8192}
                s_add_u32 s{S_T}, s{S_GW+(1 if cfg.rot == 2 else 2)}, {(64 if cfg.rot == 2 else 16)*QROW + 1024}
                buffer_load_dwordx4 v18, s[{S_W}:{S_W+3}], s{S_T} offen lds
                s_branch L_x3
                L_x1:
                s_mov_b32 m0, {SC_OFF}
                s_nop 0
                buffer_load_dwordx4 v19, s[{S_SC}:{S_SC+3}], s{S_NB} offen lds
                s_branch L_x3
                L_x2:
                s_mov_b32 m0, {ZE_OFF}
                s_nop 0
                buffer_load_dwordx4 v19, s[{S_ZE}:{S_ZE+3}], s{S_NB} offen lds
                L_x3:
                """)
            extra = {}
            if ks == 15:
                extra[2] = [lambda: lds(f"ds_read_b128 v[{EX[1]}:{EX[1]+3}], v{self.PA[0]} offset:{17*512}", "e1")]
                extra[4] = [lambda: a(f"s_lshl_b32 s{S_T}, s3, 6\ns_add_u32 s{S_T}, s{S_T}, {SC_OFF}\nv_lshlrev_b32 v19, 4, v3\nv_add_u32 v19, s{S_T}, v19")]
                extra[6] = [lambda: lds(f"ds_read_b128 v[{V_S+4}:{V_S+7}], v19", "cs")]
                extra[8] = [lambda: lds(f"ds_read_b128 v[{V_C+4}:{V_C+7}], v19 offset:1024", "cz")]
            if ks == 16:
                up = []
                for r in range(4):
                    up += [f"v_lshlrev_b32 v{V_S+r}, 16, v{V_S+4+r}", f"v_and_b32 v{V_S+4+r}, 0xffff0000, v{V_S+4+r}",
                           f"v_lshlrev_b32 v{V_C+r}, 16, v{V_C+4+r}", f"v_and_b32 v{V_C+4+r}, 0xffff0000, v{V_C+4+r}"]
                self.up2 = [f"v_add_f32 v{V_C+r}, v{V_K128}, v{V_C+r}" for r in range(8)]
                pool = pool + [("L", "cz")] + up[:10]
                self.up2 = up[10:] + self.up2
                extra[5] = [lambda: a(f"s_lshl_b32 s{S_T}, s3, 6\nv_add_u32 v18, s{S_T}, v{V_RB}")]
                extra[7] = [lambda: lds(f"ds_write_b32 v18, v{RS}", "rw")]
            if ks == 17:
                pool = list(self.up2)
                def rr(dst, st):
                    return lambda: (a(f"s_lshl_b32 s{S_T}, s{st}, 6\nv_add_u32 v18, s{S_T}, v{V_RB}"), lds(f"ds_read_b32 v{dst}, v18", f"r{dst}"))
                extra[0] = [rr(RS + 1, S_PT + 1)]
                extra[2] = [rr(RS + 2, S_PT + 2)]
                extra[4] = [rr(V_R, S_TPREV)]
            F = V_W + 8 * ks
            fst = ks == 0
            slots = []
            for u in range(4):
                f = 4 * ks + u
                x = ring[f % NR]
                slots.append(((f | 1) if cfg.w2 else f, mfma(ACC[u], F, x, fst), f + PF if f + PF < 72 else None))
                slots.append((None, mfma(ACC[u] + 4, F + 4, x, fst), None))
                if u == 0 and ks < 17: slots.append((None, mfma(RS, ONE, x, fst), None))
                if u == 0 and ks == 16:
                    slots.append(("e1", mfma(RS, ONE, EX[1]), None))
            nl = len(loads)
            total = sum(1 for x in pool if isinstance(x, str)) + nl + sum(1 for s in slots if s[2] is not None) + len(extra)
            done = 0
            lpos = {2: 0, 6: 1} if nl <= 2 else {1: 0, 2: 1, 4: 2, 6: 3}
            def pop():
                x = pool.pop(0)
                while isinstance(x, tuple):
                    if x[0] == "L": need(x[1])
                    else: self.wait_vm(x)
                    x = pool.pop(0)
                a(x)
            for i, (nd, mf, nrd) in enumerate(slots):
                if nd is not None: need(nd)
                a(mf)
                if nrd is not None: rd(nrd); done += 1
                for fn in extra.get(i, []): fn(); done += 1
                if i in lpos and lpos[i] < nl:
                    self.emit_group(loads[lpos[i]]); done += 1
                target = total * (i + 1) / len(slots)
                while pool and done + 0.5 <= target:
                    pop(); done += 1
            while pool: pop()
        self.stamp(4)

    def jobs(self):
        a, cfg = self.a, self.cfg
        self.late = True
        XR = V_G + 8
        a(f"s_add_u32 s{S_TILE}, s{S_TPREV}, 1\ns_and_b32 s{S_TILE}, s{S_TILE}, 7")
        for i in self.tile_setup(S_TILE, V_XA, S_OCUR): a(i)
        if cfg.pA:
            a(f"s_cmp_ge_u32 s3, 4\ns_cbranch_scc1 L_pa\ns_setprio {cfg.pA}\nL_pa:")
        if cfg.endry: a("@@WARM2@@")
        for p in range(3):
            a(f"ds_read_b128 v[{XR+4*p}:{XR+4*p+3}], v{V_XA} offset:{512*p}")
        for i in epi_block(self.ACP, V_S, V_C, self.RS, V_TMP, S_PO, cfg): a(i)
        self.stamp(5)
        a("s_branch L_trip")
        a("L_pref:")
        for p in range(3):
            a(f"ds_read_b128 v[{XR+4*p}:{XR+4*p+3}], v{V_XA} offset:{512*p}")
        a("L_trip:")
        for jb in range(2):
            acc, prev = (V_ACA, V_ACB) if jb == 0 else (V_ACB, V_ACA)
            va, vn = V_XA + jb, V_XA + 1 - jb
            rc, rn = V_R + jb, V_R + 1 - jb
            fill = epilogue(prev, V_S, V_C, rc, V_TMP, S_OPREV, cfg)
            RQ = 13
            for ks in range(18):
                p = 18 * jb + ks
                q = ks + 3
                r = XR + 4 * ((p + 3) % 4)
                a(f"s_waitcnt lgkmcnt({3 if RQ < ks <= RQ + 3 else 2})")
                x = XR + 4 * (p % 4)
                a(mfma(acc, V_W + 8 * ks, x, first=(ks == 0)))
                a(f"ds_read_b128 v[{r}:{r+3}], v{va if q < 18 else vn} offset:{512*(q % 18)}")
                if ks >= cfg.fs and fill: a(fill.pop(0))
                if ks == RQ: a(f"v_add_u32 v16, s{S_T}, v{V_RB}")
                if ks == RQ + 1: a(f"v_add_u32 v{vn}, s{S_T+2}, v{V_LB}")
                a(mfma(acc + 4, V_W + 8 * ks + 4, x, first=(ks == 0)))
                if ks >= cfg.fs and fill: a(fill.pop(0))
                if ks == 0: a(f"s_add_u32 s{S_T+3}, s{S_TILE}, 1")
                if ks == 1: a(f"s_and_b32 s{S_T+3}, s{S_T+3}, 7")
                if ks == RQ - 1: a(f"s_lshl_b32 s{S_T}, s{S_TILE}, 6\ns_mul_i32 s{S_T+2}, s{S_T+3}, {MT}")
                if ks == RQ: a(f"ds_read_b32 v{rn}, v16")
            assert not fill
            a(f"""
            s_mov_b32 s{S_TPREV}, s{S_TILE}
            s_mov_b32 s{S_OPREV}, s{S_OCUR}
            s_mov_b32 s{S_TILE}, s{S_T+3}
            s_mul_i32 s{S_OCUR}, s{S_TILE}, {16*ROWB}
            s_add_u32 s{S_OCUR}, s{S_OCUR}, s{S_OB}
            s_cmp_lg_u32 s{S_TRIP}, {"s55" if cfg.defer else "0"}
            s_cbranch_scc1 L_np{jb}
            """)
            for i in epi_block(self.ACP + 8 * (jb + 1), V_S, V_C, self.RS + jb + 1, V_TMP, S_PO + jb + 1, cfg): a(i)
            if jb == 0: self.stamp(6)
            a(f"L_np{jb}:")
        a(f"""
        s_add_u32 s{S_TRIP}, s{S_TRIP}, 1
        s_lshl_b32 s{S_T}, s3, 6
        s_and_b32 s{S_T}, s{S_T}, 0x100
        s_add_u32 s{S_T}, s{S_T}, s{S_TRIP}
        s_cmp_eq_u32 s{S_T}, 1
        s_cbranch_scc1 L_n8job
        s_cmp_lt_u32 s{S_TRIP}, 2
        s_cbranch_scc1 L_trip
        """)
        a("L_late:")
        self.stamp(8)
        for i in epi_block(V_ACB, V_S, V_C, V_R, V_TMP, S_OPREV, cfg): a(i)
        self.stamp(9)
        a("s_branch L_end")
        self.pad()

    def n8_job(self):
        a, cfg = self.a, self.cfg
        ACC8 = V_G + 8
        XB = [V_G, V_G + 24]
        WF = [V_G + 32, V_G + 40]
        PK = [V_G + 48, V_G + 50]
        XA8, WA8 = 16, 17
        a("L_n8job:")
        a(f"""
        s_mul_i32 s{S_T}, s14, {2*MT}
        v_add_u32 v{XA8}, s{S_T}, v{V_LB}
        v_lshlrev_b32 v{WA8}, 3, v0
        v_add_u32 v{WA8}, {W8_OFF}, v{WA8}
        ds_read_b64 v[{PK[0]}:{PK[0]+1}], v{WA8}
        ds_read_b128 v[{XB[0]}:{XB[0]+3}], v{XA8}
        ds_read_b64 v[{PK[1]}:{PK[1]+1}], v{WA8} offset:512
        ds_read_b128 v[{XB[0]+4}:{XB[0]+7}], v{XA8} offset:{MT}
        s_lshl_b32 s{S_T}, s14, 7
        v_add_u32 v18, s{S_T}, v{V_RB}
        s_waitcnt lgkmcnt(3)
        """)
        for r in range(16):
            a(f"v_mov_b32 v{ACC8+r}, 0")
        self.pad()
        for i in dequant2(WF[0], PK[0], PK[0] + 1): a(i)
        a(f"s_mov_b32 s{S_IT}, 0")
        self.pad()
        a("L_n8:")
        for h in range(2):
            cur, nxt = WF[h], WF[1 - h]
            xc, xn = XB[h], XB[1 - h]
            fill = dequant2(nxt, PK[1 - h], PK[1 - h] + 1)
            rds = [f"ds_read_b128 v[{xn}:{xn+3}], v{XA8} offset:{512*(h+1)}",
                   f"ds_read_b64 v[{PK[h]}:{PK[h]+1}], v{WA8} offset:{1024 + 512*h}",
                   f"ds_read_b128 v[{xn+4}:{xn+7}], v{XA8} offset:{MT + 512*(h+1)}"]
            a("s_waitcnt lgkmcnt(1)")
            k = 0
            for u in range(2):
                for t in range(2):
                    if k == 2: a("s_waitcnt lgkmcnt(2)")
                    a(mfma(ACC8 + 8 * u + 4 * t, cur + 4 * t, xc + 4 * u))
                    if k < 3: a(rds[k])
                    for i in fill[4*k:4*k+4]: a(i)
                    k += 1
            if h == 0:
                a(f"s_add_u32 s{S_IT}, s{S_IT}, 1")
        S8, C8 = WF[0], WF[1]
        a(f"""
        v_add_u32 v{XA8}, 1024, v{XA8}
        v_add_u32 v{WA8}, 1024, v{WA8}
        s_cmp_lt_u32 s{S_IT}, 9
        s_cbranch_scc1 L_n8
        """)
        self.pad()
        a(f"""
        v_lshlrev_b32 v17, 4, v3
        v_add_u32 v17, {SC_OFF + 512}, v17
        ds_read_b128 v[{XB[1]}:{XB[1]+3}], v17
        ds_read_b128 v[{XB[1]+4}:{XB[1]+7}], v17 offset:1024
        ds_read_b32 v58, v18
        ds_read_b32 v59, v18 offset:64
        s_waitcnt lgkmcnt(2)
        """)
        for i in unpack_consts(XB[1], XB[1] + 4, S8, C8): a(i)
        a("s_waitcnt lgkmcnt(0)")
        self.pad()
        for u in range(2):
            for i in epi_block(ACC8 + 8 * u, S8, C8, 58 + u, V_TMP, S_O8 + u, cfg): a(i)
            self.pad()
        self.stamp(7)
        a("s_branch L_pref")

def build(cfg, fname):
    g = Gen(cfg)
    g.prologue(); g.phase1(); g.jobs(); g.n8_job(); g.finish()
    lines = [l for l in g.a.lines if l.strip()]
    if cfg.endry:
        lines = [l for l in lines if l.strip() != "@@WARM@@"]
        lines = [l.replace("@@WARM2@@", "@@WARM@@") for l in lines]
        lines.insert(next(i for i, l in enumerate(lines) if "s_barrier" in l), "@@PAD@@")
        class C2: warm = 3
        lines = k6.resolve(lines, C2)
        out = []; skip = 0
        for i, l in enumerate(lines):
            t = l.strip()
            if skip: skip -= 1; continue
            if t.startswith("s_cmp_eq_u32 s3,") and "L_hop" in lines[i + 1]: skip = 1; continue
            if t.startswith("L_hop"): skip = 1; continue
            out.append(l)
            if t == "L_wret:": out.append("    s_nop 7")
            if t == "s_mov_b64 exec, 0": out.append("    s_nop 4")
        lines = out
    else:
        lines = k6.resolve(lines, cfg)
    open(fname, "w").write(wrap("\n".join(lines) + "\n", 256, 512, LDS_BYTES, 256, 256))

if __name__ == "__main__":
    cfg = Cfg()
    for kv in sys.argv[2:]:
        k, v = kv.split("=")
        setattr(cfg, k, int(v) if v.lstrip("-").isdigit() else v.replace("+", " "))
    build(cfg, sys.argv[1])
```
